```python
import torch

def _softmax(x, axis=-1):
    return torch.softmax(x, dim=axis)
def _gelu(x):
    return torch.nn.functional.gelu(x, approximate="tanh")
def _silu(x):
    return torch.nn.functional.silu(x)
def _sigmoid(x):
    return torch.sigmoid(x)
def _layernorm(x, axis=-1, eps=1e-5):
    m = x.mean(dim=axis, keepdim=True)
    v = x.var(dim=axis, keepdim=True, unbiased=False)
    return (x - m) / torch.sqrt(v + eps)
def _scatter_add(tgt, idx, src, axis=0):
    return tgt.clone().index_add_(axis, idx, src)
def _segment_sum(src, seg, n):
    out = torch.zeros((n,) + src.shape[1:], dtype=src.dtype)
    return out.index_add_(0, seg, src)
def _pad(x, pw):
    flat = tuple(v for pair in reversed(pw) for v in pair)
    return torch.nn.functional.pad(x, flat)

kernel_name = 'concat_heads__gqa_block_cached__mha_block_cached__near_ridge'

def setup_inputs():

    _w = (lambda a: (lambda t: t.to(torch.bfloat16) if t.is_floating_point() else t)(torch.as_tensor(a)))
    def _A_setup():
        B, Sq, D = 8, 160, 512
        Hq, Hkv, Sk, Dh = 32, 32, 512, 128
        assert Hq % Hkv == 0, (Hq, Hkv)
        return {
            "x": _w((lambda *s: torch.randn(*s, dtype=torch.bfloat16) * 0.8)(B, Sq, D)),
            "k_cache": _w((lambda *s: torch.randn(*s, dtype=torch.bfloat16) * 0.8)(B, Hkv, Sk, Dh)),
            "v_cache": _w((lambda *s: torch.randn(*s, dtype=torch.bfloat16) * 0.05)(B, Hkv, Sk, Dh)),
            "wq": _w((lambda *s: torch.randn(*s, dtype=torch.bfloat16) * 0.8)(D, Hq * Dh) * (D ** -0.5)),
            "wo": _w((lambda *s: torch.randn(*s, dtype=torch.bfloat16) * 0.05)(Hq * Dh, D) * ((Hq * Dh) ** -0.5)),
        }
    _A_in = _A_setup()

    def _B_setup():
        B, Sq, D = 8, 160, 512
        H, Sk, Dh = 32, 512, 128
        return {
            "x": _w((lambda *s: torch.randn(*s, dtype=torch.bfloat16) * 0.8)(B, Sq, D)),
            "k_cache": _w((lambda *s: torch.randn(*s, dtype=torch.bfloat16) * 0.8)(B, H, Sk, Dh)),
            "v_cache": _w((lambda *s: torch.randn(*s, dtype=torch.bfloat16) * 0.05)(B, H, Sk, Dh)),
            "wq": _w((lambda *s: torch.randn(*s, dtype=torch.bfloat16) * 0.8)(D, H * Dh) * (D ** -0.5)),
            "wo": _w((lambda *s: torch.randn(*s, dtype=torch.bfloat16) * 0.05)(H * Dh, D) * ((H * Dh) ** -0.5)),
        }
    _B_in = _B_setup()

    return {
        "A_x": _A_in["x"],
        "A_k_cache": _A_in["k_cache"],
        "A_v_cache": _A_in["v_cache"],
        "A_wq": _A_in["wq"],
        "A_wo": _A_in["wo"],
        "B_x": _B_in["x"],
        "B_k_cache": _B_in["k_cache"],
        "B_v_cache": _B_in["v_cache"],
        "B_wq": _B_in["wq"],
        "B_wo": _B_in["wo"],
    }

def reference(A_x, A_k_cache, A_v_cache, A_wq, A_wo, B_x, B_k_cache, B_v_cache, B_wq, B_wo):
    def _A_ref(x, k_cache, v_cache, wq, wo):
        B, Sq, D = x.shape
        Hq, Dh = 32, 128
        Hkv = k_cache.shape[1]
        rep = Hq // Hkv
        q = (lambda x, *d: x.permute(*d))((x @ wq).reshape(B, Sq, Hq, Dh), 0, 2, 1, 3)
        k = (lambda x, n, axis: torch.repeat_interleave(x, n, dim=axis))(k_cache, rep, axis=1)
        v = (lambda x, n, axis: torch.repeat_interleave(x, n, dim=axis))(v_cache, rep, axis=1)
        scores = torch.einsum("bhqd,bhkd->bhqk", q, k) * (Dh ** -0.5)
        p = _softmax(scores, axis=-1)
        o = torch.einsum("bhqk,bhkd->bhqd", p, v)
        return (lambda x, *d: x.permute(*d))(o, 0, 2, 1, 3).reshape(B, Sq, Hq * Dh) @ wo

    def _B_ref(x, k_cache, v_cache, wq, wo):
        B, Sq, D = x.shape
        H, Dh = 32, 128
        q = (lambda x, *d: x.permute(*d))((x @ wq).reshape(B, Sq, H, Dh), 0, 2, 1, 3)
        scores = torch.einsum("bhqd,bhkd->bhqk", q, k_cache) * (Dh ** -0.5)
        p = _softmax(scores, axis=-1)
        o = torch.einsum("bhqk,bhkd->bhqd", p, v_cache)
        return (lambda x, *d: x.permute(*d))(o, 0, 2, 1, 3).reshape(B, Sq, H * Dh) @ wo

    a = _A_ref(A_x, A_k_cache, A_v_cache, A_wq, A_wo)
    b = _B_ref(B_x, B_k_cache, B_v_cache, B_wq, B_wo)
    return torch.concatenate([a, b], axis=-1)
```

```python
import re

REG_RE = re.compile(r'^(-|\|)?(abs\()?([vsa])(\d+)\)?\|?$')
RNG_RE = re.compile(r'^(-)?([vsa])\[(\d+):(\d+)\]$')

def regs_of(op):
    op = op.strip()
    m = RNG_RE.match(op)
    if m:
        return [(m.group(2), i) for i in range(int(m.group(3)), int(m.group(4)) + 1)]
    m = REG_RE.match(op)
    if m:
        return [(m.group(3), int(m.group(4)))]
    if op == 'vcc':
        return [('s', 'vcc')]
    if op == 'm0':
        return [('s', 'm0')]
    if op == 'exec':
        return [('s', 'exec')]
    return []

TRANS = ('v_exp_f32', 'v_log_f32', 'v_rcp_f32', 'v_rsq_f32', 'v_sqrt_f32', 'v_sin_f32', 'v_cos_f32')

class Ins:
    def __init__(self, text):
        self.text = text
        self.label = None
        self.target = None
        t = text.split(';')[0].strip()
        if t.endswith(':'):
            self.label = t[:-1]
            self.op = 'label'
            self.kind = 'label'
            self.rd = set(); self.wr = set()
            return
        parts = t.split(None, 1)
        self.op = parts[0]
        ops = []
        if len(parts) > 1:
            ops = [o.strip() for o in parts[1].split(',')]
            ops2 = []
            for o in ops:
                ops2.append(o.split()[0] if o else o)
            self.mods = parts[1]
            ops = ops2
        else:
            self.mods = ''
        self.ops = ops
        op = self.op
        rd = []; wr = []
        self.kind = 'other'
        if op.startswith('v_mfma'):
            self.kind = 'mfma'
            self.D = regs_of(ops[0]); self.A = regs_of(ops[1]); self.B = regs_of(ops[2]); self.C = regs_of(ops[3])
            self.passes = 8 if '32x32x16' in op else 4
            wr = self.D; rd = self.A + self.B + self.C
        elif op.startswith('v_'):
            self.kind = 'valu'
            base = op.replace('_e32', '').replace('_e64', '')
            self.trans = base in TRANS
            if 'permlane' in op and 'swap' in op:
                rd = regs_of(ops[0]) + regs_of(ops[1]); wr = list(rd)
            else:
                wr = regs_of(ops[0])
                start = 1
                if base in ('v_add_co_u32', 'v_addc_co_u32', 'v_sub_co_u32'):
                    wr += regs_of(ops[1]); start = 2
                for o in ops[start:]:
                    rd += regs_of(o)
                if base.startswith('v_fmac') or base.startswith('v_pk_fmac'):
                    rd += regs_of(ops[0])
                if base == 'v_cndmask_b32' and len(ops) == 3:
                    rd.append(('s', 'vcc'))
        elif op.startswith('ds_read'):
            self.kind = 'dsr'
            wr = regs_of(ops[0]); rd = regs_of(ops[1])
        elif op.startswith('ds_write'):
            self.kind = 'dsw'
            for o in ops: rd += regs_of(o)
        elif op.startswith('buffer_load') or op.startswith('global_load'):
            if ' lds' in self.mods or '_lds_' in op:
                self.kind = 'dma'
                for o in ops: rd += regs_of(o)
                rd.append(('s', 'm0'))
            else:
                self.kind = 'vload'
                wr = regs_of(ops[0])
                for o in ops[1:]: rd += regs_of(o)
        elif op.startswith('buffer_store') or op.startswith('global_store') or op.startswith('buffer_atomic') or op.startswith('global_atomic'):
            self.kind = 'vstore'
            for o in ops: rd += regs_of(o)
            self.wide = ('x4' in op or 'x3' in op)
            self.data = regs_of(ops[0]) if op.startswith('buffer') else regs_of(ops[1])
        elif op.startswith('s_'):
            self.kind = 'salu'
            if op in ('s_branch',) or op.startswith('s_cbranch'):
                self.kind = 'branch'
                self.target = ops[0]
                if 'vcc' in op: rd.append(('s', 'vcc'))
            elif op == 's_endpgm':
                self.kind = 'end'
            elif op == 's_nop':
                self.kind = 'nop'
                self.n = int(ops[0], 0) + 1
            elif op in ('s_waitcnt', 's_barrier', 's_setprio', 's_sleep'):
                pass
            elif op.startswith('s_cmp'):
                for o in ops: rd += regs_of(o)
            else:
                wr = regs_of(ops[0])
                for o in ops[1:]: rd += regs_of(o)
        self.rd = set(rd); self.wr = set(wr)

    def states(self):
        if self.kind == 'label': return 0
        if self.kind == 'nop': return self.n
        return 1


def needed(p, c):
    n = 0
    isv = lambda s: {r for r in s if r[0] in 'va'}
    iss = lambda s: {r for r in s if r[0] == 's'}
    if p.kind == 'valu':
        pv = isv(p.wr); ps = iss(p.wr)
        if c.kind == 'mfma' and pv & c.rd: n = max(n, 2)
        if c.kind == 'valu':
            if p.trans and not c.trans and (pv & c.rd): n = max(n, 1)
            if p.trans and c.trans and (pv & c.rd): n = max(n, 1)
            if 'permlane' in c.op and (pv & c.rd): n = max(n, 2)
            if ('readfirstlane' in c.op or 'readlane' in c.op) and (pv & c.rd): n = max(n, 1)
            if 'dpp' in c.mods or 'row_' in c.mods or 'quad_perm' in c.mods:
                if pv & c.rd: n = max(n, 2)
            if ps & c.rd: n = max(n, 2)
        if c.kind in ('dma', 'vload', 'vstore') and (ps & c.rd): n = max(n, 5)
        if c.kind in ('salu', 'branch') and (ps & c.rd): n = max(n, 1)
    if p.kind == 'mfma':
        D = set(p.D)
        big = 12 if p.passes == 8 else 8
        if c.kind == 'mfma':
            if D & (set(c.A) | set(c.B)): n = max(n, big)
            if D & set(c.C):
                if not (c.C == p.D and c.passes == p.passes):
                    n = max(n, 10 if p.passes == 8 else 6)
            elif D & set(c.D):
                n = max(n, 10 if p.passes == 8 else 6)
        elif c.kind in ('valu', 'dsr', 'dsw', 'dma', 'vload', 'vstore'):
            if D & (c.rd | c.wr): n = max(n, big)
        if c.kind == 'valu' and set(p.C) & c.wr:
            n = max(n, 7 if p.passes == 8 else 3)
    if p.kind == 'salu' and ('s', 'm0') in p.wr and c.kind == 'dma':
        n = max(n, 1)
    if p.kind == 'vstore' and p.wide and c.kind in ('valu', 'mfma', 'dsr', 'vload') and set(p.data) & c.wr:
        n = max(n, 2)
    return n


class Asm:
    def __init__(self):
        self.ins = []
        self.lq = []
        self.auto_lgkm = True

    def raw(self, text):
        self.ins.append(Ins(text))

    def __call__(self, text):
        for line in text.strip().split('\n'):
            line = line.strip()
            if not line or line.startswith(';'):
                continue
            self.emit(line)

    def emit(self, text):
        i = Ins(text)
        if self.auto_lgkm and i.kind not in ('label',):
            touched = i.rd | i.wr
            last = -1
            for k, d in enumerate(self.lq):
                if d & touched: last = k
            if last >= 0:
                n = len(self.lq) - 1 - last
                n = min(n, 15)
                self.ins.append(Ins('s_waitcnt lgkmcnt(%d)' % n))
                self.lq = self.lq[len(self.lq) - n:] if n else []
        if i.op == 's_waitcnt':
            m = re.search(r'lgkmcnt\((\d+)\)', text)
            if m:
                n = int(m.group(1))
                self.lq = self.lq[len(self.lq) - n:] if n else []
                if n > len(self.lq): pass
        self.ins.append(i)
        if i.kind == 'dsr': self.lq.append(set(i.wr))
        if i.kind == 'dsw': self.lq.append(set())

    def label(self, name):
        self.ins.append(Ins(name + ':'))

    def fix_hazards(self, verbose=True):
        total = 0
        report = []
        while True:
            ins = self.ins
            lab = {x.label: k for k, x in enumerate(ins) if x.label}
            fix = None
            for k, p in enumerate(ins):
                if p.kind not in ('valu', 'mfma', 'salu', 'vstore'): continue
                if p.kind == 'salu' and ('s', 'm0') not in p.wr: continue
                stack = [(k + 1, 0)]
                seen = {}
                while stack:
                    j, d = stack.pop()
                    if j >= len(ins) or d >= 12: continue
                    if seen.get(j, 99) <= d: continue
                    seen[j] = d
                    c = ins[j]
                    if c.kind != 'label':
                        n = needed(p, c)
                        if n > d:
                            fix = (j, n - d, p, c); break
                    if c.kind == 'end': continue
                    nd = d + c.states()
                    if c.kind == 'branch':
                        stack.append((lab[c.target], nd))
                        if c.op != 's_branch': stack.append((j + 1, nd))
                    else:
                        stack.append((j + 1, nd))
                if fix: break
            if not fix: break
            j, n, p, c = fix
            if ins[j - 1].kind == 'nop' and ins[j - 1].n + n <= 16:
                ins[j - 1] = Ins('s_nop %d' % (ins[j - 1].n + n - 1))
            else:
                ins.insert(j, Ins('s_nop %d' % (n - 1)))
            total += n
            report.append('nop+%d before [%s] (after [%s])' % (n, c.text, p.text))
        if verbose:
            for r in report: print('  hazard:', r)
            print('  total inserted wait states:', total)

    def text(self):
        out = []
        for i in self.ins:
            out.append(i.text if i.kind == 'label' else '    ' + i.text)
        return '\n'.join(out) + '\n'

    def max_regs(self):
        mv = ms = 0
        for i in self.ins:
            for t, n in (i.rd | i.wr):
                if isinstance(n, int):
                    if t == 'v': mv = max(mv, n + 1)
                    if t == 's': ms = max(ms, n + 1)
        return mv, ms


def vr(base, n):
    return 'v[%d:%d]' % (base, base + n - 1) if n > 1 else 'v%d' % base
def sr(base, n):
    return 's[%d:%d]' % (base, base + n - 1) if n > 1 else 's%d' % base
```

```python
import sys, struct, math
from asmlib import Asm, vr, sr

def f2u(x):
    return struct.unpack('<I', struct.pack('<f', x))[0]

class Cfg:
    prof = False
    hprio = 1
cfg = Cfg()

U = 17408
KSLOT = [0, U, 4 * U, 6 * U, 7 * U]
VSLOT = [2 * U, 3 * U, 5 * U, 8 * U]
KH, VH = 8448, 8704
KB, VB = 1056, 1088
BUFA, BUFSZ = 53248, 55296
XSZ, WH = 20480, 17408
LDS1 = 163840
SCALE = math.log2(math.e) / math.sqrt(128.0)
PROF_OFF = 64 << 20

S_WAVE = 3
SRD_A, SRD_B, SRD_O = 4, 8, 12
S_BR, S_B, S_H0 = 44, 46, 48
S_K = [50, 51, 52, 53, 54]
S_V = [55, 56, 57, 58]
S_TMP = 59
S_CNT = 60
S_T, S_FLOOR, S_C = 61, 62, 63
S_LA, S_LB, S_INC, S_INC2, S_HOFF, S_LD = 64, 65, 66, 67, 68, 69
S_XO = 70
S_WO = [71, 72, 73, 74]
S_HH = 75
S_T2 = 76
S_STAMP = 80

def stamp(a, i):
    if cfg.prof:
        a('s_memtime %s' % sr(S_STAMP + 2 * i, 2))

def stamp_rt(a, i):
    if cfg.prof:
        a('s_memrealtime %s' % sr(S_STAMP + 2 * i, 2))

def dump_stamps(a, n, vtmp, nwaves, base_off):
    if not cfg.prof: return
    a('s_waitcnt lgkmcnt(0)')
    a('s_mul_i32 s%d, s2, %d' % (S_TMP, nwaves))
    a('s_add_u32 s%d, s%d, s%d' % (S_TMP, S_TMP, S_WAVE))
    a('s_lshl_b32 s%d, s%d, 7' % (S_TMP, S_TMP))
    a('s_add_u32 s%d, s%d, %d' % (S_TMP, S_TMP, base_off))
    a('s_add_u32 s16, s40, s%d' % S_TMP)
    a('s_addc_u32 s17, s41, 0')
    a('s_mov_b32 s18, 128')
    a('s_mov_b32 s19, 0x20000')
    a('v_mov_b32 v%d, 0' % (vtmp + 2))
    for i in range(n):
        a('v_mov_b32 v%d, s%d' % (vtmp, S_STAMP + 2 * i))
        a('v_mov_b32 v%d, s%d' % (vtmp + 1, S_STAMP + 2 * i + 1))
        a('buffer_store_dwordx2 %s, v%d, s[16:19], 0 offen offset:%d' % (vr(vtmp, 2), vtmp + 2, 8 * i))
        a('s_waitcnt vmcnt(0)')

def rotate(a):
    a('s_mov_b32 s%d, s%d' % (S_TMP, S_K[0]))
    for i in range(4): a('s_mov_b32 s%d, s%d' % (S_K[i], S_K[i + 1]))
    a('s_mov_b32 s%d, s%d' % (S_K[4], S_TMP))
    a('s_mov_b32 s%d, s%d' % (S_TMP, S_V[0]))
    for i in range(3): a('s_mov_b32 s%d, s%d' % (S_V[i], S_V[i + 1]))
    a('s_mov_b32 s%d, s%d' % (S_V[3], S_TMP))

def sel(a, dst, v1, v0):
    a('s_mov_b32 s%d, %d' % (dst, v0))
    a('s_cselect_b32 s%d, %d, s%d' % (dst, v1, dst))

def load_ptrs(a):
    a('s_load_dwordx16 s[16:31], s[0:1], 0')
    a('s_load_dwordx8 s[32:39], s[0:1], 64')
    a('s_load_dwordx2 s[40:41], s[0:1], 96')

MF32 = 'v_mfma_f32_32x32x16_bf16'
MF16 = 'v_mfma_f32_16x16x32_bf16'

def max_tree(a, regs, dst):
    regs = list(regs)
    a('v_max3_f32 v%d, v%d, v%d, v%d' % (dst, regs[0], regs[1], regs[2]))
    rest = regs[3:]
    while len(rest) >= 2:
        a('v_max3_f32 v%d, v%d, v%d, v%d' % (dst, dst, rest[0], rest[1]))
        rest = rest[2:]
    if rest:
        a('v_max_f32 v%d, v%d, v%d' % (dst, dst, rest[0]))

def gen_attn():
    a = Asm()
    a.label('attn_kernel')
    a('s_cmp_ge_u32 s2, 256')
    a('s_cbranch_scc1 L_attn_end')
    load_ptrs(a)
    stamp_rt(a, 0)
    stamp(a, 1)
    a('v_lshrrev_b32 v1, 6, v0')
    a('v_and_b32 v0, 63, v0')
    a('v_readfirstlane_b32 s%d, v1' % S_WAVE)
    a('s_and_b32 s42, s2, 7')
    a('s_lshr_b32 s43, s2, 3')
    a('s_lshr_b32 s%d, s42, 2' % S_BR)
    a('s_and_b32 s45, s42, 3')
    a('s_lshr_b32 s%d, s43, 2' % S_B)
    a('s_and_b32 s47, s43, 3')
    a('s_lshl_b32 s45, s45, 3')
    a('s_lshl_b32 s47, s47, 1')
    a('s_add_u32 s%d, s45, s47' % S_H0)
    for i in range(5): a('s_mov_b32 s%d, %d' % (S_K[i], KSLOT[(i + 1) % 5]))
    for i in range(4): a('s_mov_b32 s%d, %d' % (S_V[i], VSLOT[i]))
    a('s_mov_b32 s%d, 0xff800000' % S_T)
    a('s_mov_b32 s%d, 0xff800000' % S_FLOOR)
    a('s_mov_b32 s%d, 0x%08x' % (S_C, f2u(SCALE)))
    a('s_mov_b32 s%d, 0' % S_CNT)
    a('s_waitcnt lgkmcnt(0)')
    a('s_cmp_eq_u32 s%d, 0' % S_BR)
    a('s_cselect_b64 s[16:17], s[16:17], s[26:27]')
    a('s_cselect_b64 s[18:19], s[18:19], s[28:29]')
    a('s_cselect_b64 s[20:21], s[20:21], s[30:31]')
    a('s_cselect_b64 s[22:23], s[22:23], s[32:33]')
    a('s_cmp_ge_u32 s%d, 8' % S_WAVE)
    a('s_cbranch_scc1 L_H')
    gen_F(a)
    a.lq = []
    gen_H(a)
    a.label('L_attn_end')
    a('s_endpgm')
    return a

def gen_F(a):
    O, Q, S, F = 4, 68, 100, 116
    vKpat, vVpat, vKa, vVa, vM, vL0, vL1, vT, vT2 = 148, 149, 150, 151, 152, 153, 154, 155, 156
    vX = [157, 158, 159, 160]
    vW = [161, 162]
    vDX = [163, 164, 165]
    vDW = 166
    a('s_lshr_b32 s%d, s%d, 2' % (S_HH, S_WAVE))
    a('s_and_b32 s42, s%d, 3' % S_WAVE)
    a('s_mul_i32 s%d, s%d, 163840' % (S_TMP, S_B))
    a('s_add_u32 s%d, s16, s%d' % (SRD_A, S_TMP))
    a('s_addc_u32 s%d, s17, 0' % (SRD_A + 1))
    a('s_mov_b32 s%d, 163840' % (SRD_A + 2))
    a('s_mov_b32 s%d, 0x20000' % (SRD_A + 3))
    a('s_lshl_b32 s%d, s%d, 8' % (S_TMP, S_H0))
    a('s_add_u32 s%d, s22, s%d' % (SRD_B, S_TMP))
    a('s_addc_u32 s%d, s23, 0' % (SRD_B + 1))
    a('s_sub_u32 s%d, 4194304, s%d' % (SRD_B + 2, S_TMP))
    a('s_mov_b32 s%d, 0x20000' % (SRD_B + 3))
    a('v_lshrrev_b32 v1, 3, v0')
    a('s_lshl_b32 s%d, s%d, 3' % (S_TMP, S_WAVE))
    a('v_add_u32 v1, s%d, v1' % S_TMP)
    a('v_lshrrev_b32 v2, 1, v1')
    a('v_xor_b32 v2, v2, v0')
    a('v_and_b32 v2, 7, v2')
    a('v_lshlrev_b32 v2, 4, v2')
    a('v_lshl_add_u32 v%d, v1, 10, v2' % vDX[0])
    a('v_add_u32 v%d, 0x10000, v%d' % (vDX[1], vDX[0]))
    a('v_add_u32 v%d, 0x20000, v%d' % (vDX[2], vDX[0]))
    a('v_lshrrev_b32 v1, 4, v0')
    a('v_and_b32 v2, 2, v1')
    a('v_xor_b32 v2, v2, v0')
    a('v_and_b32 v2, 15, v2')
    a('v_lshlrev_b32 v2, 4, v2')
    a('v_lshl_add_u32 v2, v1, 15, v2')
    a('s_lshl_b32 s%d, s42, 17' % S_TMP)
    a('s_lshl_b32 s%d, s%d, 8' % (S_T2, S_HH))
    a('s_add_u32 s%d, s%d, s%d' % (S_TMP, S_TMP, S_T2))
    a('v_add_u32 v%d, s%d, v2' % (vDW, S_TMP))
    a('s_lshl_b32 s%d, s%d, 10' % (S_LA, S_WAVE))
    a('s_mul_i32 s%d, s%d, %d' % (S_LB, S_HH, WH))
    a('s_mul_i32 s%d, s42, %d' % (S_TMP, 4 * VB))
    a('s_add_u32 s%d, s%d, s%d' % (S_LB, S_LB, S_TMP))

    def issue_L(c):
        buf = BUFA + (c & 1) * BUFSZ
        a('s_mov_b32 s%d, %d' % (S_XO, c * 128))
        for e in range(4):
            a('s_add_u32 m0, s%d, %d' % (S_LB, buf + XSZ + e * VB))
            a('s_mov_b32 s%d, %d' % (S_WO[e], c * 524288 + e * 8192))
            a('buffer_load_dwordx4 v%d, %s, s%d offen lds' % (vDW, sr(SRD_B, 4), S_WO[e]))
        for k in range(3):
            if k == 2:
                a('s_cmp_ge_u32 s%d, 4' % S_WAVE)
                a('s_cbranch_scc1 L_F_skipx%d' % c)
            a('s_add_u32 m0, s%d, %d' % (S_LA, buf + k * 8192))
            a('s_nop 0')
            a('buffer_load_dwordx4 v%d, %s, s%d offen lds' % (vDX[k], sr(SRD_A, 4), S_XO))
        a.label('L_F_skipx%d' % c)

    issue_L(0)
    issue_L(1)
    a('v_and_b32 v1, 31, v0')
    a('v_lshrrev_b32 v2, 5, v0')
    a('s_lshl_b32 s%d, s42, 5' % S_TMP)
    a('v_add_u32 v3, s%d, v1' % S_TMP)
    a('v_lshrrev_b32 v%d, 1, v3' % vT)
    a('v_xor_b32 v%d, v%d, v2' % (vT, vT))
    a('v_and_b32 v%d, 7, v%d' % (vT, vT))
    a('v_lshlrev_b32 v3, 7, v3')
    a('v_add_u32 v3, %d, v3' % BUFA)
    for s in range(4):
        a('v_xor_b32 v%d, %d, v%d' % (vT2, 2 * s, vT))
        a('v_lshl_add_u32 v%d, v%d, 4, v3' % (vX[s], vT2))
    a('v_and_b32 v3, 7, v1')
    a('v_mul_u32_u24 v3, %d, v3' % KB)
    a('v_lshrrev_b32 v%d, 3, v1' % vT)
    a('v_lshl_add_u32 v3, v%d, 8, v3' % vT)
    a('v_lshrrev_b32 v%d, 4, v1' % vT)
    a('v_xor_b32 v%d, v%d, v2' % (vT, vT))
    a('v_lshl_add_u32 v3, v%d, 4, v3' % vT)
    a('s_mul_i32 s%d, s%d, %d' % (S_TMP, S_HH, KH))
    a('v_add_u32 v%d, s%d, v3' % (vKpat, S_TMP))
    a('v_bfe_u32 v3, v0, 2, 2')
    a('v_mul_u32_u24 v3, %d, v3' % VB)
    a('v_lshl_add_u32 v3, v%d, 5, v3' % vT)
    a('v_and_b32 v%d, 3, v0' % vT2)
    a('v_lshl_add_u32 v%d, v%d, 3, v3' % (vVpat, vT2))
    a('v_lshl_add_u32 v%d, v2, 8, v%d' % (vVpat, vVpat))
    a('s_mul_i32 s%d, s%d, %d' % (S_TMP, S_HH, VH))
    a('v_add_u32 v%d, s%d, v%d' % (vVpat, S_TMP, vVpat))
    a('v_and_b32 v%d, 1, v0' % vT)
    a('v_lshl_add_u32 v3, v%d, 4, v3' % vT)
    a('v_bfe_u32 v%d, v0, 1, 1' % vT)
    a('v_lshl_add_u32 v3, v%d, 3, v3' % vT)
    a('v_lshl_add_u32 v3, v2, 9, v3')
    a('s_mul_i32 s%d, s%d, %d' % (S_TMP, S_HH, WH))
    a('s_add_u32 s%d, s%d, %d' % (S_TMP, S_TMP, BUFA + XSZ))
    a('v_add_u32 v%d, s%d, v3' % (vW[0], S_TMP))
    a('v_add_u32 v%d, %d, v%d' % (vW[1], BUFSZ, vW[0]))
    a('s_lshl_b32 s%d, s%d, 3' % (S_TMP, S_BR))
    a('s_add_u32 s%d, s%d, s%d' % (S_TMP, S_TMP, S_B))
    a('s_mul_i32 s%d, s%d, 10' % (S_TMP, S_TMP))
    a('s_lshl_b32 s42, s42, 1')
    a('s_add_u32 s%d, s%d, s42' % (S_TMP, S_TMP))
    a('s_lshl_b32 s%d, s%d, 5' % (S_TMP, S_TMP))
    a('s_add_u32 s%d, s%d, s%d' % (S_TMP, S_TMP, S_H0))
    a('s_add_u32 s%d, s%d, s%d' % (S_TMP, S_TMP, S_HH))
    a('s_lshl_b32 s%d, s%d, 12' % (S_TMP, S_TMP))
    a('s_add_u32 s%d, s40, s%d' % (SRD_O, S_TMP))
    a('s_addc_u32 s%d, s41, 0' % (SRD_O + 1))
    a('s_mov_b32 s%d, %d' % (SRD_O + 2, 131072 + 4096))
    a('s_mov_b32 s%d, 0x20000' % (SRD_O + 3))
    stamp(a, 2)

    def fragset(s):
        base = Q + 20 * s
        return base, [base + 4 + 4 * t for t in range(4)]
    def reads(c, s):
        xb, wf = fragset(s)
        out = ['ds_read_b128 %s, v%d offset:%d' % (vr(xb, 4), vX[s], (c & 1) * BUFSZ)]
        for t in range(4):
            for e in range(2):
                out.append('ds_read_b64_tr_b16 %s, v%d offset:%d' % (vr(wf[t] + 2 * e, 2), vW[c & 1], s * 4352 + e * 256 + t * 64))
        return out
    for c in range(8):
        a('s_waitcnt vmcnt(%d)' % (6 if c == 0 else 0))
        a('s_barrier')
        for r in reads(c, 0) + reads(c, 1): a(r)
        if 1 <= c <= 6: issue_L(c + 1)
        for s in range(4):
            xb, wf = fragset(s)
            pend = reads(c, s + 2) if s < 2 else []
            for t in range(4):
                cin = '0' if (c == 0 and s == 0) else vr(O + 16 * t, 16)
                a('%s %s, %s, %s, %s' % (MF32, vr(O + 16 * t, 16), vr(wf[t], 4), vr(xb, 4), cin))
                for r in pend[:3]: a(r)
                pend = pend[3:]
        if c == 0: stamp(a, 3)
    stamp(a, 4)
    a('s_barrier')
    a('v_add_u32 v%d, %d, v%d' % (vKa, KSLOT[0], vKpat))
    for s in range(8):
        a('ds_read_b128 %s, v%d offset:%d' % (vr(F + 4 * s, 4), vKa, s * 32))
    for t in range(4):
        for i in range(8):
            a('v_cvt_pk_bf16_f32 v%d, v%d, v%d' % (Q + 8 * t + i, O + 16 * t + 2 * i, O + 16 * t + 2 * i + 1))
    for i in range(64): a('v_mov_b32 v%d, 0' % (O + i))
    a('v_mov_b32 v%d, 0' % vM)
    a('v_mov_b32 v%d, 0' % vL0)
    a('v_mov_b32 v%d, 0' % vL1)
    a('v_add_u32 v%d, s%d, v%d' % (vVa, S_V[0], vVpat))
    stamp(a, 5)
    entry = [set(x) for x in a.lq]
    a.label('L_att_F')
    a('s_barrier')
    for s in range(8):
        ks, t = s // 4, s % 4
        a('%s %s, %s, %s, %s' % (MF32, vr(S, 16), vr(F + 4 * s, 4), vr(Q + 4 * s, 4), '0' if s == 0 else vr(S, 16)))
        for e in range(2):
            a('ds_read_b64_tr_b16 %s, v%d offset:%d' % (vr(F + 4 * s + 2 * e, 2), vVa, ks * 4352 + e * 512 + t * 64))
    a('v_add_u32 v%d, s%d, v%d' % (vKa, S_K[0], vKpat))
    rotate(a)
    a('v_add_u32 v%d, s%d, v%d' % (vVa, S_V[0], vVpat))
    for i in range(16):
        a('v_fma_f32 v%d, v%d, s%d, -v%d' % (S + i, S + i, S_C, vM))
    max_tree(a, range(S, S + 16), vT)
    a('v_cmp_lt_f32 vcc, s%d, v%d' % (S_T, vT))
    a('s_cbranch_vccnz L_slow_F')
    a.label('L_back_F')
    def sm_half(h):
        b = S + 8 * h
        out = []
        for i in range(8): out.append('v_exp_f32 v%d, v%d' % (b + i, b + i))
        for i in range(4):
            out.append('v_add_f32 v%d, v%d, v%d' % (vL0, vL0, b + 2 * i))
            out.append('v_add_f32 v%d, v%d, v%d' % (vL1, vL1, b + 2 * i + 1))
            out.append('v_cvt_pk_bf16_f32 v%d, v%d, v%d' % (b + i, b + 2 * i, b + 2 * i + 1))
        return out
    for x in sm_half(0): a(x)
    pend = sm_half(1)
    for ks in range(2):
        for t in range(4):
            s = 4 * ks + t
            a('%s %s, %s, %s, %s' % (MF32, vr(O + 16 * t, 16), vr(F + 4 * s, 4), vr(S + 8 * ks, 4), vr(O + 16 * t, 16)))
            a('ds_read_b128 %s, v%d offset:%d' % (vr(F + 4 * s, 4), vKa, s * 32))
            for x in pend[:5]: a(x)
            pend = pend[5:]
    a('s_add_u32 s%d, s%d, 1' % (S_CNT, S_CNT))
    a('s_cmp_lt_u32 s%d, 16' % S_CNT)
    a('s_cbranch_scc1 L_att_F')
    assert [set(x) for x in a.lq] == entry, (a.lq, entry)
    stamp(a, 6)
    a('v_add_f32 v%d, v%d, v%d' % (vL0, vL0, vL1))
    a('v_mov_b32 v%d, v%d' % (vL1, vL0))
    a('v_permlane32_swap_b32 v%d, v%d' % (vL0, vL1))
    a('v_add_f32 v%d, v%d, v%d' % (vL0, vL0, vL1))
    a('v_rcp_f32 v%d, v%d' % (vL0, vL0))
    a('v_and_b32 v1, 15, v0')
    a('v_lshlrev_b32 v1, 4, v1')
    a('v_lshrrev_b32 v2, 5, v0')
    a('v_lshl_add_u32 v1, v2, 8, v1')
    a('v_bfe_u32 v2, v0, 4, 1')
    a('v_lshl_add_u32 v1, v2, 17, v1')
    for t in range(4):
        for up in range(2):
            b = O + 16 * t + 8 * up
            for i in range(8): a('v_mul_f32 v%d, v%d, v%d' % (b + i, b + i, vL0))
            for i in range(4): a('v_cvt_pk_bf16_f32 v%d, v%d, v%d' % (b + i, b + 2 * i, b + 2 * i + 1))
            a('buffer_store_dwordx4 %s, v1, %s, 0 offen offset:%d' % (vr(b, 4), sr(SRD_O, 4), t * 1024 + up * 512))
    if cfg.prof:
        a('s_waitcnt vmcnt(0)')
        stamp(a, 7); stamp_rt(a, 8)
        dump_stamps(a, 9, 100, 12, PROF_OFF)
    a('s_endpgm')
    a.label('L_slow_F')
    a('v_mov_b32 v%d, v%d' % (vT2, vT))
    a('v_permlane32_swap_b32 v%d, v%d' % (vT, vT2))
    a('v_max_f32 v%d, v%d, v%d' % (vT, vT, vT2))
    a('v_max_f32 v%d, s%d, v%d' % (vT, S_FLOOR, vT))
    a('v_add_f32 v%d, v%d, v%d' % (vM, vM, vT))
    a('v_min_f32_e64 v%d, -v%d, 0' % (vT2, vT))
    a('v_exp_f32 v%d, v%d' % (vT2, vT2))
    for i in range(16): a('v_sub_f32 v%d, v%d, v%d' % (S + i, S + i, vT))
    a('v_mul_f32 v%d, v%d, v%d' % (vL0, vL0, vT2))
    a('v_mul_f32 v%d, v%d, v%d' % (vL1, vL1, vT2))
    for i in range(64): a('v_mul_f32 v%d, v%d, v%d' % (O + i, O + i, vT2))
    a('s_mov_b32 s%d, 0' % S_FLOOR)
    a('s_mov_b32 s%d, 0x41000000' % S_T)
    a('s_branch L_back_F')

def gen_H(a):
    O, Q, S, F = 4, 36, 52, 60
    QP = 92
    vKpat, vVpat, vKa, vVa = [136, 137], [138, 139], [140, 141], [142, 143]
    vM, vL0, vL1, vT, vT2 = 144, 145, 146, 147, 148
    vX = [149, 150]
    vW = [[151, 152], [153, 154]]
    vD = 155
    a.label('L_H')
    if cfg.hprio: a('s_setprio %d' % cfg.hprio)
    a('s_sub_u32 s42, s%d, 8' % S_WAVE)
    a('s_lshr_b32 s%d, s42, 1' % S_HH)
    a('s_and_b32 s43, s42, 1')
    a('s_cmp_eq_u32 s%d, 0' % S_HH)
    a('s_cselect_b64 s[18:19], s[18:19], s[20:21]')
    sel(a, S_INC, KB - 256, VB - 256)
    sel(a, S_INC2, KB + 768, VB + 768)
    sel(a, S_HOFF, KH, VH)
    sel(a, S_LB, 1024, 4096)
    a('s_mul_i32 s%d, s%d, s43' % (S_HOFF, S_HOFF))
    a('s_mov_b32 s%d, 0' % S_LA)
    a('s_lshl_b32 s%d, s%d, 5' % (S_TMP, S_B))
    a('s_add_u32 s%d, s%d, s%d' % (S_TMP, S_TMP, S_H0))
    a('s_add_u32 s%d, s%d, s43' % (S_TMP, S_TMP))
    a('s_lshl_b32 s%d, s%d, 17' % (S_TMP, S_TMP))
    a('s_add_u32 s%d, s18, s%d' % (SRD_A, S_TMP))
    a('s_addc_u32 s%d, s19, 0' % (SRD_A + 1))
    a('s_mov_b32 s%d, 131072' % (SRD_A + 2))
    a('s_mov_b32 s%d, 0x20000' % (SRD_A + 3))
    a('v_lshrrev_b32 v1, 4, v0')
    a('v_lshrrev_b32 v2, 5, v0')
    a('v_xor_b32 v2, v2, v0')
    a('v_and_b32 v2, 15, v2')
    a('v_lshlrev_b32 v2, 4, v2')
    a('v_lshl_add_u32 v%d, v1, 11, v2' % vD)
    a('s_cmp_eq_u32 s%d, 0' % S_HH)
    a('s_cbranch_scc1 L_H_kpat')
    a('v_and_b32 v2, 1, v1')
    a('v_lshlrev_b32 v2, 1, v2')
    a('v_xor_b32 v2, v2, v0')
    a('v_and_b32 v2, 15, v2')
    a('v_lshlrev_b32 v2, 4, v2')
    a('v_lshl_add_u32 v%d, v1, 10, v2' % vD)
    a.label('L_H_kpat')

    def dma_list():
        out = []
        for n in range(8):
            g = []
            if n > 0:
                g.append('s_add_u32 m0, m0, s%d' % (S_INC2 if n == 4 else S_INC))
                g.append('s_nop 0')
            g.append('buffer_load_dwordx4 v%d, %s, s%d offen offset:%d lds' % (vD, sr(SRD_A, 4), S_LA if n < 4 else S_LB, (n & 3) * 256))
            out.append(g)
        out[7].append('s_add_u32 s%d, s%d, 8192' % (S_LA, S_LA))
        out[7].append('s_add_u32 s%d, s%d, 8192' % (S_LB, S_LB))
        return out
    def issue_static(kslot, vslot, tag):
        a('s_cmp_eq_u32 s%d, 0' % S_HH)
        if kslot is None: a('s_cbranch_scc1 L_H_skip%s' % tag)
        if vslot is None: a('s_cbranch_scc0 L_H_skip%s' % tag)
        sel(a, S_LD, kslot or 0, vslot or 0)
        a('s_add_u32 m0, s%d, s%d' % (S_LD, S_HOFF))
        a('s_nop 0')
        for g in dma_list():
            for x in g: a(x)
        a.label('L_H_skip%s' % tag)
    issue_static(KSLOT[0], VSLOT[0], 'a')
    issue_static(KSLOT[1], None, 'b')
    a('v_and_b32 v2, 15, v0')
    a('s_lshl_b32 s%d, s43, 4' % S_TMP)
    a('s_add_u32 s%d, s%d, 128' % (S_TMP, S_TMP))
    a('v_add_u32 v3, s%d, v2' % S_TMP)
    a('v_lshrrev_b32 v%d, 1, v3' % vT)
    a('v_xor_b32 v%d, v%d, v1' % (vT, vT))
    a('v_and_b32 v%d, 7, v%d' % (vT, vT))
    a('v_lshlrev_b32 v3, 7, v3')
    a('v_add_u32 v3, %d, v3' % BUFA)
    for s in range(2):
        a('v_xor_b32 v%d, %d, v%d' % (vT2, 4 * s, vT))
        a('v_lshl_add_u32 v%d, v%d, 4, v3' % (vX[s], vT2))
    a('v_and_b32 v3, 7, v2')
    a('v_mul_u32_u24 v3, %d, v3' % KB)
    a('v_lshrrev_b32 v%d, 3, v2' % vT)
    a('v_lshl_add_u32 v3, v%d, 8, v3' % vT)
    a('s_mul_i32 s%d, s%d, %d' % (S_TMP, S_HH, KH))
    a('v_add_u32 v3, s%d, v3' % S_TMP)
    a('v_lshl_add_u32 v%d, v1, 4, v3' % vKpat[0])
    a('v_xor_b32 v%d, 1, v1' % vT)
    a('v_lshl_add_u32 v%d, v%d, 4, v3' % (vKpat[1], vT))
    a('v_add_u32 v%d, 512, v%d' % (vKpat[1], vKpat[1]))
    a('v_bfe_u32 v3, v0, 2, 2')
    a('v_mul_u32_u24 v3, %d, v3' % VB)
    a('v_and_b32 v%d, 3, v0' % vT)
    a('v_lshl_add_u32 v3, v%d, 3, v3' % vT)
    a('v_and_b32 v%d, 1, v1' % vT)
    a('v_xor_b32 v%d, 1, v%d' % (vT2, vT))
    a('s_mul_i32 s%d, s%d, %d' % (S_TMP, S_HH, VH))
    a('v_lshl_add_u32 v2, v1, 8, v3')
    a('v_add_u32 v2, s%d, v2' % S_TMP)
    a('v_lshl_add_u32 v%d, v%d, 5, v2' % (vVpat[0], vT))
    a('v_lshl_add_u32 v%d, v%d, 5, v2' % (vVpat[1], vT2))
    a('v_lshrrev_b32 v2, 1, v1')
    a('v_mul_u32_u24 v2, %d, v2' % (4 * VB))
    a('v_add_u32 v2, v2, v3')
    a('v_lshl_add_u32 v2, v%d, 9, v2' % vT)
    a('s_mul_i32 s%d, s%d, %d' % (S_TMP, S_HH, WH))
    a('s_add_u32 s%d, s%d, %d' % (S_TMP, S_TMP, BUFA + XSZ))
    a('v_add_u32 v2, s%d, v2' % S_TMP)
    a('v_lshl_add_u32 v%d, v%d, 5, v2' % (vW[0][0], vT))
    a('v_lshl_add_u32 v%d, v%d, 5, v2' % (vW[0][1], vT2))
    a('v_add_u32 v%d, %d, v%d' % (vW[1][0], BUFSZ, vW[0][0]))
    a('v_add_u32 v%d, %d, v%d' % (vW[1][1], BUFSZ, vW[0][1]))
    a('s_lshl_b32 s%d, s%d, 3' % (S_TMP, S_BR))
    a('s_add_u32 s%d, s%d, s%d' % (S_TMP, S_TMP, S_B))
    a('s_mul_i32 s%d, s%d, 10' % (S_TMP, S_TMP))
    a('s_add_u32 s%d, s%d, s43' % (S_TMP, S_TMP))
    a('s_add_u32 s%d, s%d, 8' % (S_TMP, S_TMP))
    a('s_lshl_b32 s%d, s%d, 5' % (S_TMP, S_TMP))
    a('s_add_u32 s%d, s%d, s%d' % (S_TMP, S_TMP, S_H0))
    a('s_add_u32 s%d, s%d, s%d' % (S_TMP, S_TMP, S_HH))
    a('s_lshl_b32 s%d, s%d, 12' % (S_TMP, S_TMP))
    a('s_add_u32 s%d, s40, s%d' % (SRD_O, S_TMP))
    a('s_addc_u32 s%d, s41, 0' % (SRD_O + 1))
    a('s_mov_b32 s%d, 4096' % (SRD_O + 2))
    a('s_mov_b32 s%d, 0x20000' % (SRD_O + 3))
    stamp(a, 2)
    XF = [F, F + 4]
    WF = [[F + 8 + 4 * (8 * s + t) for t in range(8)] for s in range(2)]
    for c in range(8):
        a('s_barrier')
        rd = []
        for s in range(2):
            rd.append('ds_read_b128 %s, v%d offset:%d' % (vr(XF[s], 4), vX[s], (c & 1) * BUFSZ))
            for t in range(8):
                for e in range(2):
                    rd.append('ds_read_b64_tr_b16 %s, v%d offset:%d' % (vr(WF[s][t] + 2 * e, 2), vW[c & 1][t & 1], s * 8704 + e * 256 + (t >> 1) * 64))
        for r in rd[:17]: a(r)
        pend = rd[17:]
        if c == 7:
            issue_static(KSLOT[2], VSLOT[1], 'c')
            issue_static(None, VSLOT[2], 'd')
        for s in range(2):
            for t in range(8):
                cin = '0' if (c == 0 and s == 0) else vr(O + 4 * t, 4)
                a('%s %s, %s, %s, %s' % (MF16, vr(O + 4 * t, 4), vr(WF[s][t], 4), vr(XF[s], 4), cin))
                for r in pend[:3]: a(r)
                pend = pend[3:]
        if c == 0: stamp(a, 3)
    stamp(a, 4)
    a('s_waitcnt vmcnt(16)')
    a('s_barrier')
    issue_static(KSLOT[3], None, 'e')
    for u in range(2): a('v_add_u32 v%d, %d, v%d' % (vKa[u], KSLOT[0], vKpat[u]))
    for n in range(8):
        a('ds_read_b128 %s, v%d offset:%d' % (vr(F + 4 * n, 4), vKa[n & 1], (n >> 1) * 64))
    for s in range(4):
        b = O + 8 * s
        q = Q + 4 * s
        for i in range(4): a('v_cvt_pk_bf16_f32 v%d, v%d, v%d' % (q + i, b + 2 * i, b + 2 * i + 1))
    for s in range(4):
        q = Q + 4 * s
        for i in range(2): a('v_permlane32_swap_b32 v%d, v%d' % (q + i, q + 2 + i))
    for s in range(4):
        q = Q + 4 * s
        for i in range(2): a('v_permlane16_swap_b32 v%d, v%d' % (q + i, q + 2 + i))
    for i in range(32): a('v_mov_b32 v%d, 0' % (O + i))
    a('v_mov_b32 v%d, 0' % vM)
    a('v_mov_b32 v%d, 0' % vL0)
    a('v_mov_b32 v%d, 0' % vL1)
    for p in range(2): a('v_add_u32 v%d, s%d, v%d' % (vVa[p], S_V[0], vVpat[p]))
    stamp(a, 5)
    entry = [set(x) for x in a.lq]
    a.label('L_att_H')
    a('s_cmp_eq_u32 s%d, 0' % S_HH)
    a('s_cselect_b32 s%d, s%d, s%d' % (S_LD, S_K[3], S_V[3]))
    a('s_add_u32 m0, s%d, s%d' % (S_LD, S_HOFF))
    a('s_waitcnt vmcnt(16)')
    a('s_barrier')
    dl = dma_list()
    for n in range(8):
        s, u = n >> 1, n & 1
        for x in dl[n]: a(x)
        a('%s %s, %s, %s, %s' % (MF16, vr(S + 4 * u, 4), vr(F + 4 * n, 4), vr(Q + 4 * s, 4), '0' if s == 0 else vr(S + 4 * u, 4)))
        for e in range(2):
            a('ds_read_b64_tr_b16 %s, v%d offset:%d' % (vr(F + 4 * n + 2 * e, 2), vVa[n & 1], e * 4352 + (n >> 1) * 64))
    for u in range(2): a('v_add_u32 v%d, s%d, v%d' % (vKa[u], S_K[0], vKpat[u]))
    rotate(a)
    for p in range(2): a('v_add_u32 v%d, s%d, v%d' % (vVa[p], S_V[0], vVpat[p]))
    for i in range(8):
        a('v_fma_f32 v%d, v%d, s%d, -v%d' % (S + i, S + i, S_C, vM))
    max_tree(a, range(S, S + 8), vT)
    a('v_cmp_lt_f32 vcc, s%d, v%d' % (S_T, vT))
    a('s_cbranch_vccnz L_slow_H')
    a.label('L_back_H')
    for i in range(8): a('v_exp_f32 v%d, v%d' % (S + i, S + i))
    for i in range(4):
        a('v_add_f32 v%d, v%d, v%d' % (vL0, vL0, S + 2 * i))
        a('v_add_f32 v%d, v%d, v%d' % (vL1, vL1, S + 2 * i + 1))
        a('v_cvt_pk_bf16_f32 v%d, v%d, v%d' % (S + i, S + 2 * i, S + 2 * i + 1))
    for n in range(8):
        a('%s %s, %s, %s, %s' % (MF16, vr(O + 4 * n, 4), vr(F + 4 * n, 4), vr(S, 4), vr(O + 4 * n, 4)))
        a('ds_read_b128 %s, v%d offset:%d' % (vr(F + 4 * n, 4), vKa[n & 1], (n >> 1) * 64))
    a('s_add_u32 s%d, s%d, 1' % (S_CNT, S_CNT))
    a('s_cmp_lt_u32 s%d, 16' % S_CNT)
    a('s_cbranch_scc1 L_att_H')
    assert [set(x) for x in a.lq] == entry
    stamp(a, 6)
    a('v_add_f32 v%d, v%d, v%d' % (vL0, vL0, vL1))
    a('v_mov_b32 v%d, v%d' % (vL1, vL0))
    a('v_permlane32_swap_b32 v%d, v%d' % (vL0, vL1))
    a('v_add_f32 v%d, v%d, v%d' % (vL0, vL0, vL1))
    a('v_mov_b32 v%d, v%d' % (vL1, vL0))
    a('v_permlane16_swap_b32 v%d, v%d' % (vL0, vL1))
    a('v_add_f32 v%d, v%d, v%d' % (vL0, vL0, vL1))
    a('v_rcp_f32 v%d, v%d' % (vL0, vL0))
    a('v_and_b32 v1, 15, v0')
    a('v_lshlrev_b32 v1, 4, v1')
    a('v_bfe_u32 v2, v0, 4, 1')
    a('v_lshl_add_u32 v1, v2, 8, v1')
    a('v_lshrrev_b32 v2, 5, v0')
    a('v_lshl_add_u32 v1, v2, 3, v1')
    for t in range(8):
        b = O + 4 * t
        for i in range(4): a('v_mul_f32 v%d, v%d, v%d' % (b + i, b + i, vL0))
        for i in range(2): a('v_cvt_pk_bf16_f32 v%d, v%d, v%d' % (b + i, b + 2 * i, b + 2 * i + 1))
        a('buffer_store_dwordx2 %s, v1, %s, 0 offen offset:%d' % (vr(b, 2), sr(SRD_O, 4), t * 512))
    if cfg.prof:
        a('s_waitcnt vmcnt(0)')
        stamp(a, 7); stamp_rt(a, 8)
        dump_stamps(a, 9, 100, 12, PROF_OFF)
    a('s_endpgm')
    a.label('L_slow_H')
    a('v_mov_b32 v%d, v%d' % (vT2, vT))
    a('v_permlane32_swap_b32 v%d, v%d' % (vT, vT2))
    a('v_max_f32 v%d, v%d, v%d' % (vT, vT, vT2))
    a('v_mov_b32 v%d, v%d' % (vT2, vT))
    a('v_permlane16_swap_b32 v%d, v%d' % (vT, vT2))
    a('v_max_f32 v%d, v%d, v%d' % (vT, vT, vT2))
    a('v_max_f32 v%d, s%d, v%d' % (vT, S_FLOOR, vT))
    a('v_add_f32 v%d, v%d, v%d' % (vM, vM, vT))
    a('v_min_f32_e64 v%d, -v%d, 0' % (vT2, vT))
    a('v_exp_f32 v%d, v%d' % (vT2, vT2))
    for i in range(8): a('v_sub_f32 v%d, v%d, v%d' % (S + i, S + i, vT))
    a('v_mul_f32 v%d, v%d, v%d' % (vL0, vL0, vT2))
    a('v_mul_f32 v%d, v%d, v%d' % (vL1, vL1, vT2))
    for i in range(32): a('v_mul_f32 v%d, v%d, v%d' % (O + i, O + i, vT2))
    a('s_mov_b32 s%d, 0' % S_FLOOR)
    a('s_mov_b32 s%d, 0x41000000' % S_T)
    a('s_branch L_back_H')

LDS2 = 81920
def gen_oproj():
    D = 4
    ACC, OF, WFR = 4, 84, 164
    vO = [180, 181, 182, 183, 184]
    vDW = [185, 186, 187, 188]
    vR = [189, 190, 191, 192]
    a = Asm()
    a.label('oproj_kernel')
    a('s_cmp_ge_u32 s2, 256')
    a('s_cbranch_scc1 L_op_end')
    load_ptrs(a)
    stamp_rt(a, 0)
    stamp(a, 1)
    a('v_lshrrev_b32 v1, 6, v0')
    a('v_and_b32 v0, 63, v0')
    a('v_readfirstlane_b32 s%d, v1' % S_WAVE)
    a('s_and_b32 s42, s2, 7')
    a('s_lshr_b32 s43, s2, 3')
    a('s_lshr_b32 s%d, s42, 2' % S_BR)
    a('s_and_b32 s45, s42, 3')
    a('s_lshr_b32 s46, s43, 3')
    a('s_lshl_b32 s45, s45, 2')
    a('s_add_u32 s45, s45, s46')
    a('s_and_b32 s47, s43, 7')
    a('s_waitcnt lgkmcnt(0)')
    a('s_cmp_eq_u32 s%d, 0' % S_BR)
    a('s_cselect_b64 s[24:25], s[24:25], s[34:35]')
    a('s_lshl_b32 s%d, s%d, 4' % (S_TMP, S_BR))
    a('s_add_u32 s%d, s%d, s45' % (S_TMP, S_TMP))
    a('s_mul_i32 s%d, s%d, 655360' % (S_TMP, S_TMP))
    a('s_lshl_b32 s%d, s%d, 15' % (S_T2, S_WAVE))
    a('s_add_u32 s%d, s%d, s%d' % (S_TMP, S_TMP, S_T2))
    a('s_add_u32 s%d, s40, s%d' % (SRD_A, S_TMP))
    a('s_addc_u32 s%d, s41, 0' % (SRD_A + 1))
    a('s_mov_b32 s%d, %d' % (SRD_A + 2, 4 * 131072 + 32768))
    a('s_mov_b32 s%d, 0x20000' % (SRD_A + 3))
    a('s_lshl_b32 s%d, s%d, 20' % (S_TMP, S_WAVE))
    a('s_lshl_b32 s%d, s47, 7' % S_T2)
    a('s_add_u32 s%d, s%d, s%d' % (S_TMP, S_TMP, S_T2))
    a('s_add_u32 s%d, s24, s%d' % (SRD_B, S_TMP))
    a('s_addc_u32 s%d, s25, 0' % (SRD_B + 1))
    a('s_mov_b32 s%d, %d' % (SRD_B + 2, 1048576 - 896))
    a('s_mov_b32 s%d, 0x20000' % (SRD_B + 3))
    a('v_lshlrev_b32 v%d, 4, v0' % vO[0])
    for q in range(1, 5): a('v_add_u32 v%d, %d, v%d' % (vO[q], q * 131072, vO[0]))
    a('v_lshrrev_b32 v1, 4, v0')
    a('v_lshlrev_b32 v2, 1, v1')
    a('v_xor_b32 v2, v2, v0')
    a('v_and_b32 v2, 7, v2')
    a('v_lshlrev_b32 v2, 4, v2')
    a('v_lshrrev_b32 v3, 3, v0')
    a('v_lshl_add_u32 v%d, v3, 10, v2' % vDW[0])
    for n in range(1, 4): a('v_add_u32 v%d, %d, v%d' % (vDW[n], n * 8192, vDW[0]))
    a('s_lshl_b32 s%d, s%d, 14' % (S_LA, S_WAVE))

    def issue(i):
        sl = i % D
        a('s_mov_b32 s%d, %d' % (S_LB, i * 32768))
        for n in range(4):
            a('s_add_u32 m0, s%d, %d' % (S_LA, sl * 4096 + n * 1024))
            a('s_mov_b32 s%d, %d' % (S_XO, i * 1024))
            a('buffer_load_dwordx4 v%d, %s, s%d offen lds' % (vDW[n], sr(SRD_B, 4), S_LB))
        for q in range(5):
            a('buffer_load_dwordx4 %s, v%d, %s, s%d offen' % (vr(OF + 20 * sl + 4 * q, 4), vO[q], sr(SRD_A, 4), S_XO))
    for i in range(D - 1): issue(i)
    a('v_bfe_u32 v2, v0, 2, 2')
    a('v_and_b32 v3, 1, v1')
    a('v_lshl_add_u32 v2, v3, 2, v2')
    a('v_lshrrev_b32 v3, 1, v2')
    a('v_lshrrev_b32 v1, 1, v1')
    a('v_lshl_add_u32 v2, v1, 4, v2')
    a('v_lshlrev_b32 v2, 7, v2')
    a('v_and_b32 v1, 3, v0')
    a('v_lshl_add_u32 v2, v1, 3, v2')
    a('v_add_u32 v2, s%d, v2' % S_LA)
    for t in range(4):
        a('v_xor_b32 v1, %d, v3' % t)
        a('v_lshl_add_u32 v%d, v1, 5, v2' % vR[t])
    stamp(a, 2)
    NK = 32
    for i in range(NK):
        sl = i % D
        if i + D - 1 < NK: issue(i + D - 1)
        left = min(NK - 1 - i, D - 1)
        a('s_waitcnt vmcnt(%d)' % (9 * left))
        for t in range(4):
            for e in range(2):
                a('ds_read_b64_tr_b16 %s, v%d offset:%d' % (vr(WFR + 4 * t + 2 * e, 2), vR[t], sl * 4096 + e * 1024))
        for t in range(4):
            for q in range(5):
                d = vr(ACC + 4 * (5 * t + q), 4)
                a('%s %s, %s, %s, %s' % (MF16, d, vr(WFR + 4 * t, 4), vr(OF + 20 * sl + 4 * q, 4), '0' if i == 0 else d))
        if i == 0: stamp(a, 3)
    stamp(a, 4)
    a('s_barrier')
    a('s_mul_i32 s%d, s%d, 20480' % (S_TMP, S_WAVE))
    a('v_lshlrev_b32 v1, 4, v0')
    a('v_add_u32 v2, s%d, v1' % S_TMP)
    for k in range(20):
        a('ds_write_b128 v2, %s offset:%d' % (vr(ACC + 4 * k, 4), k * 1024))
    a('s_mul_i32 s%d, s45, %d' % (S_TMP, 80 * 2048))
    a('s_lshl_b32 s%d, s%d, 10' % (S_T2, S_BR))
    a('s_add_u32 s%d, s%d, s%d' % (S_TMP, S_TMP, S_T2))
    a('s_lshl_b32 s%d, s47, 7' % S_T2)
    a('s_add_u32 s%d, s%d, s%d' % (S_TMP, S_TMP, S_T2))
    a('s_lshl_b32 s%d, s%d, 5' % (S_T2, S_WAVE))
    a('s_add_u32 s%d, s%d, s%d' % (S_TMP, S_TMP, S_T2))
    a('s_add_u32 s%d, s36, s%d' % (SRD_O, S_TMP))
    a('s_addc_u32 s%d, s37, 0' % (SRD_O + 1))
    a('s_mov_b32 s%d, %d' % (SRD_O + 2, 79 * 2048 + 32))
    a('s_mov_b32 s%d, 0x20000' % (SRD_O + 3))
    a('s_mul_i32 s%d, s%d, 5120' % (S_TMP, S_WAVE))
    a('v_add_u32 v2, s%d, v1' % S_TMP)
    a('v_and_b32 v3, 15, v0')
    a('v_lshlrev_b32 v3, 11, v3')
    a('v_lshrrev_b32 v1, 4, v0')
    a('v_lshl_add_u32 v3, v1, 3, v3')
    a('v_add_u32 v1, 40960, v2')
    a('s_waitcnt lgkmcnt(0)')
    a('s_barrier')
    R = OF
    for q in range(5):
        for w in range(4):
            a('ds_read_b128 %s, v%d offset:%d' % (vr(R + 16 * q + 4 * w, 4), 2 if w < 2 else 1, (w & 1) * 20480 + q * 1024))
    for q in range(5):
        b = R + 16 * q
        for i in range(4):
            a('v_add_f32 v%d, v%d, v%d' % (b + i, b + i, b + 4 + i))
            a('v_add_f32 v%d, v%d, v%d' % (b + 8 + i, b + 8 + i, b + 12 + i))
        for i in range(4):
            a('v_add_f32 v%d, v%d, v%d' % (b + i, b + i, b + 8 + i))
        for i in range(2):
            a('v_cvt_pk_bf16_f32 v%d, v%d, v%d' % (b + i, b + 2 * i, b + 2 * i + 1))
        a('s_mov_b32 s%d, %d' % (S_XO, q * 32768))
        a('buffer_store_dwordx2 %s, v3, %s, s%d offen' % (vr(b, 2), sr(SRD_O, 4), S_XO))
    if cfg.prof:
        a('s_waitcnt vmcnt(0)')
        stamp(a, 5); stamp_rt(a, 6)
        dump_stamps(a, 7, 100, 4, PROF_OFF + (1 << 20))
    a.label('L_op_end')
    a('s_endpgm')
    return a

HEADER = open('concat_heads__gqa_block_cached__mha_block_cached__near_ridge.s.ref').read().split('; Override')[0]

def kd(name, nv, ns):
    acc = (nv + 3) // 4 * 4
    return '''.amdhsa_kernel %s
  .amdhsa_next_free_vgpr %d
  .amdhsa_next_free_sgpr %d
  .amdhsa_accum_offset %d
  .amdhsa_group_segment_fixed_size 0
  .amdhsa_kernarg_size 104
  .amdhsa_user_sgpr_count 2
  .amdhsa_user_sgpr_kernarg_segment_ptr 1
  .amdhsa_system_sgpr_workgroup_id_x 1
.end_amdhsa_kernel
''' % (name, nv, ns, acc)

def build(path, verbose=True):
    k1 = gen_attn(); k1.fix_hazards(verbose)
    k2 = gen_oproj(); k2.fix_hazards(verbose)
    v1, s1 = k1.max_regs(); v2, s2 = k2.max_regs()
    if verbose: print('attn regs', v1, s1, 'oproj regs', v2, s2)
    assert v1 <= 168
    out = HEADER
    out += '; @launch kernel=attn_kernel grid=(256,1,1) block=(768,1,1) lds=%d\n' % LDS1
    out += '; @launch kernel=oproj_kernel grid=(256,1,1) block=(256,1,1) lds=%d\n' % LDS2
    out += '.amdgcn_target "amdgcn-amd-amdhsa--gfx950"\n.text\n'
    for name, k in (('attn_kernel', k1), ('oproj_kernel', k2)):
        out += '.globl %s\n.p2align 8\n.type %s,@function\n' % (name, name)
        out += k.text()
    out += '.section .rodata,"a"\n.p2align 6\n' + kd('attn_kernel', v1, s1) + '.p2align 6\n' + kd('oproj_kernel', v2, s2)
    open(path, 'w').write(out)

if __name__ == '__main__':
    path = sys.argv[1]
    for kv in sys.argv[2:]:
        k, v = kv.split('=')
        setattr(cfg, k, int(v))
    build(path)
```

```python
import sys, struct, math
from asmlib import Asm, vr, sr

def f2u(x):
    return struct.unpack('<I', struct.pack('<f', x))[0]

class Cfg:
    prof = False
    hprio = 1
    ntkv = 0
    ntw = 0
    nto = 0
    nto2 = 0
    ntwo = 0
cfg = Cfg()

U = 17408
KSLOT = [0, U, 4 * U, 6 * U, 7 * U]
VSLOT = [2 * U, 3 * U, 5 * U, 8 * U]
KH, VH = 8448, 8704
KB, VB = 1056, 1088
BUFA, BUFSZ = 53248, 55296
XSZ, WH = 20480, 17408
LDS1 = 163840
SCALE = math.log2(math.e) / math.sqrt(128.0)
PROF_OFF = 64 << 20

S_WAVE = 3
SRD_A, SRD_B, SRD_O = 4, 8, 12
S_BR, S_B, S_H0 = 44, 46, 48
S_K = [50, 51, 52, 53, 54]
S_V = [55, 56, 57, 58]
S_TMP = 59
S_CNT = 60
S_T, S_FLOOR, S_C = 61, 62, 63
S_LA, S_LB, S_INC, S_INC2, S_HOFF, S_LD = 64, 65, 66, 67, 68, 69
S_XO = 70
S_WO = [71, 72, 73, 74]
S_HH = 75
S_T2 = 76
S_STAMP = 80

def stamp(a, i):
    if cfg.prof:
        a('s_memtime %s' % sr(S_STAMP + 2 * i, 2))

def stamp_rt(a, i):
    if cfg.prof:
        a('s_memrealtime %s' % sr(S_STAMP + 2 * i, 2))

def dump_stamps(a, n, vtmp, nwaves, base_off):
    if not cfg.prof: return
    a('s_waitcnt lgkmcnt(0)')
    a('s_mul_i32 s%d, s2, %d' % (S_TMP, nwaves))
    a('s_add_u32 s%d, s%d, s%d' % (S_TMP, S_TMP, S_WAVE))
    a('s_lshl_b32 s%d, s%d, 7' % (S_TMP, S_TMP))
    a('s_add_u32 s%d, s%d, %d' % (S_TMP, S_TMP, base_off))
    a('s_add_u32 s16, s40, s%d' % S_TMP)
    a('s_addc_u32 s17, s41, 0')
    a('s_mov_b32 s18, 128')
    a('s_mov_b32 s19, 0x20000')
    a('v_mov_b32 v%d, 0' % (vtmp + 2))
    for i in range(n):
        a('v_mov_b32 v%d, s%d' % (vtmp, S_STAMP + 2 * i))
        a('v_mov_b32 v%d, s%d' % (vtmp + 1, S_STAMP + 2 * i + 1))
        a('buffer_store_dwordx2 %s, v%d, s[16:19], 0 offen offset:%d' % (vr(vtmp, 2), vtmp + 2, 8 * i))
        a('s_waitcnt vmcnt(0)')

def rotate(a):
    a('s_mov_b32 s%d, s%d' % (S_TMP, S_K[0]))
    for i in range(4): a('s_mov_b32 s%d, s%d' % (S_K[i], S_K[i + 1]))
    a('s_mov_b32 s%d, s%d' % (S_K[4], S_TMP))
    a('s_mov_b32 s%d, s%d' % (S_TMP, S_V[0]))
    for i in range(3): a('s_mov_b32 s%d, s%d' % (S_V[i], S_V[i + 1]))
    a('s_mov_b32 s%d, s%d' % (S_V[3], S_TMP))

def sel(a, dst, v1, v0):
    a('s_mov_b32 s%d, %d' % (dst, v0))
    a('s_cselect_b32 s%d, %d, s%d' % (dst, v1, dst))

def load_ptrs(a):
    a('s_load_dwordx16 s[16:31], s[0:1], 0')
    a('s_load_dwordx8 s[32:39], s[0:1], 64')
    a('s_load_dwordx2 s[40:41], s[0:1], 96')

MF32 = 'v_mfma_f32_32x32x16_bf16'
MF16 = 'v_mfma_f32_16x16x32_bf16'

def max_tree(a, regs, dst):
    regs = list(regs)
    a('v_max3_f32 v%d, v%d, v%d, v%d' % (dst, regs[0], regs[1], regs[2]))
    rest = regs[3:]
    while len(rest) >= 2:
        a('v_max3_f32 v%d, v%d, v%d, v%d' % (dst, dst, rest[0], rest[1]))
        rest = rest[2:]
    if rest:
        a('v_max_f32 v%d, v%d, v%d' % (dst, dst, rest[0]))

def gen_attn():
    a = Asm()
    a.label('attn_kernel')
    a('s_cmp_ge_u32 s2, 256')
    a('s_cbranch_scc1 L_attn_end')
    load_ptrs(a)
    stamp_rt(a, 0)
    stamp(a, 1)
    a('v_lshrrev_b32 v1, 6, v0')
    a('v_and_b32 v0, 63, v0')
    a('v_readfirstlane_b32 s%d, v1' % S_WAVE)
    a('s_and_b32 s42, s2, 7')
    a('s_lshr_b32 s43, s2, 3')
    a('s_lshr_b32 s%d, s42, 2' % S_BR)
    a('s_and_b32 s45, s42, 3')
    a('s_lshr_b32 s%d, s43, 2' % S_B)
    a('s_and_b32 s47, s43, 3')
    a('s_lshl_b32 s45, s45, 3')
    a('s_lshl_b32 s47, s47, 1')
    a('s_add_u32 s%d, s45, s47' % S_H0)
    for i in range(5): a('s_mov_b32 s%d, %d' % (S_K[i], KSLOT[(i + 1) % 5]))
    for i in range(4): a('s_mov_b32 s%d, %d' % (S_V[i], VSLOT[i]))
    a('s_mov_b32 s%d, 0xff800000' % S_T)
    a('s_mov_b32 s%d, 0xff800000' % S_FLOOR)
    a('s_mov_b32 s%d, 0x%08x' % (S_C, f2u(SCALE)))
    a('s_mov_b32 s%d, 0' % S_CNT)
    a('s_waitcnt lgkmcnt(0)')
    a('s_cmp_eq_u32 s%d, 0' % S_BR)
    a('s_cselect_b64 s[16:17], s[16:17], s[26:27]')
    a('s_cselect_b64 s[18:19], s[18:19], s[28:29]')
    a('s_cselect_b64 s[20:21], s[20:21], s[30:31]')
    a('s_cselect_b64 s[22:23], s[22:23], s[32:33]')
    a('s_cmp_ge_u32 s%d, 8' % S_WAVE)
    a('s_cbranch_scc1 L_H')
    gen_F(a)
    a.lq = []
    gen_H(a)
    a.label('L_attn_end')
    a('s_endpgm')
    return a

def gen_F(a):
    O, Q, S, F = 4, 68, 100, 116
    vKpat, vVpat, vKa, vVa, vM, vL0, vL1, vT, vT2 = 148, 149, 150, 151, 152, 153, 154, 155, 156
    vX = [157, 158, 159, 160]
    vW = [161, 162]
    vDX = [163, 164, 165]
    vDW = 166
    a('s_lshr_b32 s%d, s%d, 2' % (S_HH, S_WAVE))
    a('s_and_b32 s42, s%d, 3' % S_WAVE)
    a('s_mul_i32 s%d, s%d, 163840' % (S_TMP, S_B))
    a('s_add_u32 s%d, s16, s%d' % (SRD_A, S_TMP))
    a('s_addc_u32 s%d, s17, 0' % (SRD_A + 1))
    a('s_mov_b32 s%d, 163840' % (SRD_A + 2))
    a('s_mov_b32 s%d, 0x20000' % (SRD_A + 3))
    a('s_lshl_b32 s%d, s%d, 8' % (S_TMP, S_H0))
    a('s_add_u32 s%d, s22, s%d' % (SRD_B, S_TMP))
    a('s_addc_u32 s%d, s23, 0' % (SRD_B + 1))
    a('s_sub_u32 s%d, 4194304, s%d' % (SRD_B + 2, S_TMP))
    a('s_mov_b32 s%d, 0x20000' % (SRD_B + 3))
    a('v_lshrrev_b32 v1, 3, v0')
    a('s_lshl_b32 s%d, s%d, 3' % (S_TMP, S_WAVE))
    a('v_add_u32 v1, s%d, v1' % S_TMP)
    a('v_lshrrev_b32 v2, 1, v1')
    a('v_xor_b32 v2, v2, v0')
    a('v_and_b32 v2, 7, v2')
    a('v_lshlrev_b32 v2, 4, v2')
    a('v_lshl_add_u32 v%d, v1, 10, v2' % vDX[0])
    a('v_add_u32 v%d, 0x10000, v%d' % (vDX[1], vDX[0]))
    a('v_add_u32 v%d, 0x20000, v%d' % (vDX[2], vDX[0]))
    a('v_lshrrev_b32 v1, 4, v0')
    a('v_and_b32 v2, 2, v1')
    a('v_xor_b32 v2, v2, v0')
    a('v_and_b32 v2, 15, v2')
    a('v_lshlrev_b32 v2, 4, v2')
    a('v_lshl_add_u32 v2, v1, 15, v2')
    a('s_lshl_b32 s%d, s42, 17' % S_TMP)
    a('s_lshl_b32 s%d, s%d, 8' % (S_T2, S_HH))
    a('s_add_u32 s%d, s%d, s%d' % (S_TMP, S_TMP, S_T2))
    a('v_add_u32 v%d, s%d, v2' % (vDW, S_TMP))
    a('s_lshl_b32 s%d, s%d, 10' % (S_LA, S_WAVE))
    a('s_mul_i32 s%d, s%d, %d' % (S_LB, S_HH, WH))
    a('s_mul_i32 s%d, s42, %d' % (S_TMP, 4 * VB))
    a('s_add_u32 s%d, s%d, s%d' % (S_LB, S_LB, S_TMP))

    def issue_L(c):
        buf = BUFA + (c & 1) * BUFSZ
        a('s_mov_b32 s%d, %d' % (S_XO, c * 128))
        for e in range(4):
            a('s_add_u32 m0, s%d, %d' % (S_LB, buf + XSZ + e * VB))
            a('s_mov_b32 s%d, %d' % (S_WO[e], c * 524288 + e * 8192))
            a('buffer_load_dwordx4 v%d, %s, s%d offen lds' % (vDW, sr(SRD_B, 4), S_WO[e]))
        for k in range(3):
            if k == 2:
                a('s_cmp_ge_u32 s%d, 4' % S_WAVE)
                a('s_cbranch_scc1 L_F_skipx%d' % c)
            a('s_add_u32 m0, s%d, %d' % (S_LA, buf + k * 8192))
            a('s_nop 0')
            a('buffer_load_dwordx4 v%d, %s, s%d offen lds' % (vDX[k], sr(SRD_A, 4), S_XO))
        a.label('L_F_skipx%d' % c)

    issue_L(0)
    issue_L(1)
    a('v_and_b32 v1, 31, v0')
    a('v_lshrrev_b32 v2, 5, v0')
    a('s_lshl_b32 s%d, s42, 5' % S_TMP)
    a('v_add_u32 v3, s%d, v1' % S_TMP)
    a('v_lshrrev_b32 v%d, 1, v3' % vT)
    a('v_xor_b32 v%d, v%d, v2' % (vT, vT))
    a('v_and_b32 v%d, 7, v%d' % (vT, vT))
    a('v_lshlrev_b32 v3, 7, v3')
    a('v_add_u32 v3, %d, v3' % BUFA)
    for s in range(4):
        a('v_xor_b32 v%d, %d, v%d' % (vT2, 2 * s, vT))
        a('v_lshl_add_u32 v%d, v%d, 4, v3' % (vX[s], vT2))
    a('v_and_b32 v3, 7, v1')
    a('v_mul_u32_u24 v3, %d, v3' % KB)
    a('v_lshrrev_b32 v%d, 3, v1' % vT)
    a('v_lshl_add_u32 v3, v%d, 8, v3' % vT)
    a('v_lshrrev_b32 v%d, 4, v1' % vT)
    a('v_xor_b32 v%d, v%d, v2' % (vT, vT))
    a('v_lshl_add_u32 v3, v%d, 4, v3' % vT)
    a('s_mul_i32 s%d, s%d, %d' % (S_TMP, S_HH, KH))
    a('v_add_u32 v%d, s%d, v3' % (vKpat, S_TMP))
    a('v_bfe_u32 v3, v0, 2, 2')
    a('v_mul_u32_u24 v3, %d, v3' % VB)
    a('v_lshl_add_u32 v3, v%d, 5, v3' % vT)
    a('v_and_b32 v%d, 3, v0' % vT2)
    a('v_lshl_add_u32 v%d, v%d, 3, v3' % (vVpat, vT2))
    a('v_lshl_add_u32 v%d, v2, 8, v%d' % (vVpat, vVpat))
    a('s_mul_i32 s%d, s%d, %d' % (S_TMP, S_HH, VH))
    a('v_add_u32 v%d, s%d, v%d' % (vVpat, S_TMP, vVpat))
    a('v_and_b32 v%d, 1, v0' % vT)
    a('v_lshl_add_u32 v3, v%d, 4, v3' % vT)
    a('v_bfe_u32 v%d, v0, 1, 1' % vT)
    a('v_lshl_add_u32 v3, v%d, 3, v3' % vT)
    a('v_lshl_add_u32 v3, v2, 9, v3')
    a('s_mul_i32 s%d, s%d, %d' % (S_TMP, S_HH, WH))
    a('s_add_u32 s%d, s%d, %d' % (S_TMP, S_TMP, BUFA + XSZ))
    a('v_add_u32 v%d, s%d, v3' % (vW[0], S_TMP))
    a('v_add_u32 v%d, %d, v%d' % (vW[1], BUFSZ, vW[0]))
    a('s_lshl_b32 s%d, s%d, 3' % (S_TMP, S_BR))
    a('s_add_u32 s%d, s%d, s%d' % (S_TMP, S_TMP, S_B))
    a('s_mul_i32 s%d, s%d, 10' % (S_TMP, S_TMP))
    a('s_lshl_b32 s42, s42, 1')
    a('s_add_u32 s%d, s%d, s42' % (S_TMP, S_TMP))
    a('s_lshl_b32 s%d, s%d, 5' % (S_TMP, S_TMP))
    a('s_add_u32 s%d, s%d, s%d' % (S_TMP, S_TMP, S_H0))
    a('s_add_u32 s%d, s%d, s%d' % (S_TMP, S_TMP, S_HH))
    a('s_lshl_b32 s%d, s%d, 12' % (S_TMP, S_TMP))
    a('s_add_u32 s%d, s40, s%d' % (SRD_O, S_TMP))
    a('s_addc_u32 s%d, s41, 0' % (SRD_O + 1))
    a('s_mov_b32 s%d, %d' % (SRD_O + 2, 131072 + 4096))
    a('s_mov_b32 s%d, 0x20000' % (SRD_O + 3))
    stamp(a, 2)

    def fragset(s):
        base = Q + 20 * s
        return base, [base + 4 + 4 * t for t in range(4)]
    def reads(c, s):
        xb, wf = fragset(s)
        out = ['ds_read_b128 %s, v%d offset:%d' % (vr(xb, 4), vX[s], (c & 1) * BUFSZ)]
        for t in range(4):
            for e in range(2):
                out.append('ds_read_b64_tr_b16 %s, v%d offset:%d' % (vr(wf[t] + 2 * e, 2), vW[c & 1], s * 4352 + e * 256 + t * 64))
        return out
    for c in range(8):
        a('s_waitcnt vmcnt(%d)' % (6 if c == 0 else 0))
        a('s_barrier')
        for r in reads(c, 0) + reads(c, 1): a(r)
        if 1 <= c <= 6: issue_L(c + 1)
        for s in range(4):
            xb, wf = fragset(s)
            pend = reads(c, s + 2) if s < 2 else []
            for t in range(4):
                cin = '0' if (c == 0 and s == 0) else vr(O + 16 * t, 16)
                a('%s %s, %s, %s, %s' % (MF32, vr(O + 16 * t, 16), vr(wf[t], 4), vr(xb, 4), cin))
                for r in pend[:3]: a(r)
                pend = pend[3:]
        if c == 0: stamp(a, 3)
    stamp(a, 4)
    a('s_barrier')
    a('v_add_u32 v%d, %d, v%d' % (vKa, KSLOT[0], vKpat))
    for s in range(8):
        a('ds_read_b128 %s, v%d offset:%d' % (vr(F + 4 * s, 4), vKa, s * 32))
    for t in range(4):
        for i in range(8):
            a('v_cvt_pk_bf16_f32 v%d, v%d, v%d' % (Q + 8 * t + i, O + 16 * t + 2 * i, O + 16 * t + 2 * i + 1))
    for i in range(64): a('v_mov_b32 v%d, 0' % (O + i))
    a('v_mov_b32 v%d, 0' % vM)
    a('v_mov_b32 v%d, 0' % vL0)
    a('v_mov_b32 v%d, 0' % vL1)
    a('v_add_u32 v%d, s%d, v%d' % (vVa, S_V[0], vVpat))
    stamp(a, 5)
    entry = [set(x) for x in a.lq]
    a.label('L_att_F')
    a('s_barrier')
    for s in range(8):
        ks, t = s // 4, s % 4
        a('%s %s, %s, %s, %s' % (MF32, vr(S, 16), vr(F + 4 * s, 4), vr(Q + 4 * s, 4), '0' if s == 0 else vr(S, 16)))
        for e in range(2):
            a('ds_read_b64_tr_b16 %s, v%d offset:%d' % (vr(F + 4 * s + 2 * e, 2), vVa, ks * 4352 + e * 512 + t * 64))
    a('v_add_u32 v%d, s%d, v%d' % (vKa, S_K[0], vKpat))
    rotate(a)
    a('v_add_u32 v%d, s%d, v%d' % (vVa, S_V[0], vVpat))
    for i in range(16):
        a('v_fma_f32 v%d, v%d, s%d, -v%d' % (S + i, S + i, S_C, vM))
    max_tree(a, range(S, S + 16), vT)
    a('v_cmp_lt_f32 vcc, s%d, v%d' % (S_T, vT))
    a('s_cbranch_vccnz L_slow_F')
    a.label('L_back_F')
    def sm_half(h):
        b = S + 8 * h
        out = []
        for i in range(8): out.append('v_exp_f32 v%d, v%d' % (b + i, b + i))
        for i in range(4):
            out.append('v_add_f32 v%d, v%d, v%d' % (vL0, vL0, b + 2 * i))
            out.append('v_add_f32 v%d, v%d, v%d' % (vL1, vL1, b + 2 * i + 1))
            out.append('v_cvt_pk_bf16_f32 v%d, v%d, v%d' % (b + i, b + 2 * i, b + 2 * i + 1))
        return out
    for x in sm_half(0): a(x)
    pend = sm_half(1)
    for ks in range(2):
        for t in range(4):
            s = 4 * ks + t
            a('%s %s, %s, %s, %s' % (MF32, vr(O + 16 * t, 16), vr(F + 4 * s, 4), vr(S + 8 * ks, 4), vr(O + 16 * t, 16)))
            a('ds_read_b128 %s, v%d offset:%d' % (vr(F + 4 * s, 4), vKa, s * 32))
            for x in pend[:5]: a(x)
            pend = pend[5:]
    a('s_add_u32 s%d, s%d, 1' % (S_CNT, S_CNT))
    a('s_cmp_lt_u32 s%d, 16' % S_CNT)
    a('s_cbranch_scc1 L_att_F')
    assert [set(x) for x in a.lq] == entry, (a.lq, entry)
    stamp(a, 6)
    a('v_add_f32 v%d, v%d, v%d' % (vL0, vL0, vL1))
    a('v_mov_b32 v%d, v%d' % (vL1, vL0))
    a('v_permlane32_swap_b32 v%d, v%d' % (vL0, vL1))
    a('v_add_f32 v%d, v%d, v%d' % (vL0, vL0, vL1))
    a('v_rcp_f32 v%d, v%d' % (vL0, vL0))
    a('v_and_b32 v1, 15, v0')
    a('v_lshlrev_b32 v1, 4, v1')
    a('v_lshrrev_b32 v2, 5, v0')
    a('v_lshl_add_u32 v1, v2, 8, v1')
    a('v_bfe_u32 v2, v0, 4, 1')
    a('v_lshl_add_u32 v1, v2, 17, v1')
    for t in range(4):
        for up in range(2):
            b = O + 16 * t + 8 * up
            for i in range(8): a('v_mul_f32 v%d, v%d, v%d' % (b + i, b + i, vL0))
            for i in range(4): a('v_cvt_pk_bf16_f32 v%d, v%d, v%d' % (b + i, b + 2 * i, b + 2 * i + 1))
            a('buffer_store_dwordx4 %s, v1, %s, 0 offen offset:%d' % (vr(b, 4), sr(SRD_O, 4), t * 1024 + up * 512))
    if cfg.prof:
        a('s_waitcnt vmcnt(0)')
        stamp(a, 7); stamp_rt(a, 8)
        dump_stamps(a, 9, 100, 12, PROF_OFF)
    a('s_endpgm')
    a.label('L_slow_F')
    a('v_mov_b32 v%d, v%d' % (vT2, vT))
    a('v_permlane32_swap_b32 v%d, v%d' % (vT, vT2))
    a('v_max_f32 v%d, v%d, v%d' % (vT, vT, vT2))
    a('v_max_f32 v%d, s%d, v%d' % (vT, S_FLOOR, vT))
    a('v_add_f32 v%d, v%d, v%d' % (vM, vM, vT))
    a('v_min_f32_e64 v%d, -v%d, 0' % (vT2, vT))
    a('v_exp_f32 v%d, v%d' % (vT2, vT2))
    for i in range(16): a('v_sub_f32 v%d, v%d, v%d' % (S + i, S + i, vT))
    a('v_mul_f32 v%d, v%d, v%d' % (vL0, vL0, vT2))
    a('v_mul_f32 v%d, v%d, v%d' % (vL1, vL1, vT2))
    for i in range(64): a('v_mul_f32 v%d, v%d, v%d' % (O + i, O + i, vT2))
    a('s_mov_b32 s%d, 0' % S_FLOOR)
    a('s_mov_b32 s%d, 0x41000000' % S_T)
    a('s_branch L_back_F')

def gen_H(a):
    O, Q, S, F = 4, 36, 52, 60
    QP = 92
    vKpat, vVpat, vKa, vVa = [136, 137], [138, 139], [140, 141], [142, 143]
    vM, vL0, vL1, vT, vT2 = 144, 145, 146, 147, 148
    vX = [149, 150]
    vW = [[151, 152], [153, 154]]
    vD = 155
    a.label('L_H')
    if cfg.hprio: a('s_setprio %d' % cfg.hprio)
    a('s_sub_u32 s42, s%d, 8' % S_WAVE)
    a('s_lshr_b32 s%d, s42, 1' % S_HH)
    a('s_and_b32 s43, s42, 1')
    a('s_cmp_eq_u32 s%d, 0' % S_HH)
    a('s_cselect_b64 s[18:19], s[18:19], s[20:21]')
    sel(a, S_INC, KB - 256, VB - 256)
    sel(a, S_INC2, KB + 768, VB + 768)
    sel(a, S_HOFF, KH, VH)
    sel(a, S_LB, 1024, 4096)
    a('s_mul_i32 s%d, s%d, s43' % (S_HOFF, S_HOFF))
    a('s_mov_b32 s%d, 0' % S_LA)
    a('s_lshl_b32 s%d, s%d, 5' % (S_TMP, S_B))
    a('s_add_u32 s%d, s%d, s%d' % (S_TMP, S_TMP, S_H0))
    a('s_add_u32 s%d, s%d, s43' % (S_TMP, S_TMP))
    a('s_lshl_b32 s%d, s%d, 17' % (S_TMP, S_TMP))
    a('s_add_u32 s%d, s18, s%d' % (SRD_A, S_TMP))
    a('s_addc_u32 s%d, s19, 0' % (SRD_A + 1))
    a('s_mov_b32 s%d, 131072' % (SRD_A + 2))
    a('s_mov_b32 s%d, 0x20000' % (SRD_A + 3))
    a('v_lshrrev_b32 v1, 4, v0')
    a('v_lshrrev_b32 v2, 5, v0')
    a('v_xor_b32 v2, v2, v0')
    a('v_and_b32 v2, 15, v2')
    a('v_lshlrev_b32 v2, 4, v2')
    a('v_lshl_add_u32 v%d, v1, 11, v2' % vD)
    a('s_cmp_eq_u32 s%d, 0' % S_HH)
    a('s_cbranch_scc1 L_H_kpat')
    a('v_and_b32 v2, 1, v1')
    a('v_lshlrev_b32 v2, 1, v2')
    a('v_xor_b32 v2, v2, v0')
    a('v_and_b32 v2, 15, v2')
    a('v_lshlrev_b32 v2, 4, v2')
    a('v_lshl_add_u32 v%d, v1, 10, v2' % vD)
    a.label('L_H_kpat')

    def dma_list():
        out = []
        for n in range(8):
            g = []
            if n > 0:
                g.append('s_add_u32 m0, m0, s%d' % (S_INC2 if n == 4 else S_INC))
                g.append('s_nop 0')
            g.append('buffer_load_dwordx4 v%d, %s, s%d offen offset:%d%s lds' % (vD, sr(SRD_A, 4), S_LA if n < 4 else S_LB, (n & 3) * 256, ' nt' if cfg.ntkv else ''))
            out.append(g)
        out[7].append('s_add_u32 s%d, s%d, 8192' % (S_LA, S_LA))
        out[7].append('s_add_u32 s%d, s%d, 8192' % (S_LB, S_LB))
        return out
    def issue_static(kslot, vslot, tag):
        a('s_cmp_eq_u32 s%d, 0' % S_HH)
        if kslot is None: a('s_cbranch_scc1 L_H_skip%s' % tag)
        if vslot is None: a('s_cbranch_scc0 L_H_skip%s' % tag)
        sel(a, S_LD, kslot or 0, vslot or 0)
        a('s_add_u32 m0, s%d, s%d' % (S_LD, S_HOFF))
        a('s_nop 0')
        for g in dma_list():
            for x in g: a(x)
        a.label('L_H_skip%s' % tag)
    issue_static(KSLOT[0], VSLOT[0], 'a')
    issue_static(KSLOT[1], None, 'b')
    a('v_and_b32 v2, 15, v0')
    a('s_lshl_b32 s%d, s43, 4' % S_TMP)
    a('s_add_u32 s%d, s%d, 128' % (S_TMP, S_TMP))
    a('v_add_u32 v3, s%d, v2' % S_TMP)
    a('v_lshrrev_b32 v%d, 1, v3' % vT)
    a('v_xor_b32 v%d, v%d, v1' % (vT, vT))
    a('v_and_b32 v%d, 7, v%d' % (vT, vT))
    a('v_lshlrev_b32 v3, 7, v3')
    a('v_add_u32 v3, %d, v3' % BUFA)
    for s in range(2):
        a('v_xor_b32 v%d, %d, v%d' % (vT2, 4 * s, vT))
        a('v_lshl_add_u32 v%d, v%d, 4, v3' % (vX[s], vT2))
    a('v_and_b32 v3, 7, v2')
    a('v_mul_u32_u24 v3, %d, v3' % KB)
    a('v_lshrrev_b32 v%d, 3, v2' % vT)
    a('v_lshl_add_u32 v3, v%d, 8, v3' % vT)
    a('s_mul_i32 s%d, s%d, %d' % (S_TMP, S_HH, KH))
    a('v_add_u32 v3, s%d, v3' % S_TMP)
    a('v_lshl_add_u32 v%d, v1, 4, v3' % vKpat[0])
    a('v_xor_b32 v%d, 1, v1' % vT)
    a('v_lshl_add_u32 v%d, v%d, 4, v3' % (vKpat[1], vT))
    a('v_add_u32 v%d, 512, v%d' % (vKpat[1], vKpat[1]))
    a('v_bfe_u32 v3, v0, 2, 2')
    a('v_mul_u32_u24 v3, %d, v3' % VB)
    a('v_and_b32 v%d, 3, v0' % vT)
    a('v_lshl_add_u32 v3, v%d, 3, v3' % vT)
    a('v_and_b32 v%d, 1, v1' % vT)
    a('v_xor_b32 v%d, 1, v%d' % (vT2, vT))
    a('s_mul_i32 s%d, s%d, %d' % (S_TMP, S_HH, VH))
    a('v_lshl_add_u32 v2, v1, 8, v3')
    a('v_add_u32 v2, s%d, v2' % S_TMP)
    a('v_lshl_add_u32 v%d, v%d, 5, v2' % (vVpat[0], vT))
    a('v_lshl_add_u32 v%d, v%d, 5, v2' % (vVpat[1], vT2))
    a('v_lshrrev_b32 v2, 1, v1')
    a('v_mul_u32_u24 v2, %d, v2' % (4 * VB))
    a('v_add_u32 v2, v2, v3')
    a('v_lshl_add_u32 v2, v%d, 9, v2' % vT)
    a('s_mul_i32 s%d, s%d, %d' % (S_TMP, S_HH, WH))
    a('s_add_u32 s%d, s%d, %d' % (S_TMP, S_TMP, BUFA + XSZ))
    a('v_add_u32 v2, s%d, v2' % S_TMP)
    a('v_lshl_add_u32 v%d, v%d, 5, v2' % (vW[0][0], vT))
    a('v_lshl_add_u32 v%d, v%d, 5, v2' % (vW[0][1], vT2))
    a('v_add_u32 v%d, %d, v%d' % (vW[1][0], BUFSZ, vW[0][0]))
    a('v_add_u32 v%d, %d, v%d' % (vW[1][1], BUFSZ, vW[0][1]))
    a('s_lshl_b32 s%d, s%d, 3' % (S_TMP, S_BR))
    a('s_add_u32 s%d, s%d, s%d' % (S_TMP, S_TMP, S_B))
    a('s_mul_i32 s%d, s%d, 10' % (S_TMP, S_TMP))
    a('s_add_u32 s%d, s%d, s43' % (S_TMP, S_TMP))
    a('s_add_u32 s%d, s%d, 8' % (S_TMP, S_TMP))
    a('s_lshl_b32 s%d, s%d, 5' % (S_TMP, S_TMP))
    a('s_add_u32 s%d, s%d, s%d' % (S_TMP, S_TMP, S_H0))
    a('s_add_u32 s%d, s%d, s%d' % (S_TMP, S_TMP, S_HH))
    a('s_lshl_b32 s%d, s%d, 12' % (S_TMP, S_TMP))
    a('s_add_u32 s%d, s40, s%d' % (SRD_O, S_TMP))
    a('s_addc_u32 s%d, s41, 0' % (SRD_O + 1))
    a('s_mov_b32 s%d, 4096' % (SRD_O + 2))
    a('s_mov_b32 s%d, 0x20000' % (SRD_O + 3))
    stamp(a, 2)
    XF = [F, F + 4]
    WF = [[F + 8 + 4 * (8 * s + t) for t in range(8)] for s in range(2)]
    for c in range(8):
        a('s_barrier')
        rd = []
        for s in range(2):
            rd.append('ds_read_b128 %s, v%d offset:%d' % (vr(XF[s], 4), vX[s], (c & 1) * BUFSZ))
            for t in range(8):
                for e in range(2):
                    rd.append('ds_read_b64_tr_b16 %s, v%d offset:%d' % (vr(WF[s][t] + 2 * e, 2), vW[c & 1][t & 1], s * 8704 + e * 256 + (t >> 1) * 64))
        for r in rd[:17]: a(r)
        pend = rd[17:]
        if c == 7:
            issue_static(KSLOT[2], VSLOT[1], 'c')
            issue_static(None, VSLOT[2], 'd')
        for s in range(2):
            for t in range(8):
                cin = '0' if (c == 0 and s == 0) else vr(O + 4 * t, 4)
                a('%s %s, %s, %s, %s' % (MF16, vr(O + 4 * t, 4), vr(WF[s][t], 4), vr(XF[s], 4), cin))
                for r in pend[:3]: a(r)
                pend = pend[3:]
        if c == 0: stamp(a, 3)
    stamp(a, 4)
    a('s_waitcnt vmcnt(16)')
    a('s_barrier')
    issue_static(KSLOT[3], None, 'e')
    for u in range(2): a('v_add_u32 v%d, %d, v%d' % (vKa[u], KSLOT[0], vKpat[u]))
    for n in range(8):
        a('ds_read_b128 %s, v%d offset:%d' % (vr(F + 4 * n, 4), vKa[n & 1], (n >> 1) * 64))
    for s in range(4):
        b = O + 8 * s
        q = Q + 4 * s
        for i in range(4): a('v_cvt_pk_bf16_f32 v%d, v%d, v%d' % (q + i, b + 2 * i, b + 2 * i + 1))
    for s in range(4):
        q = Q + 4 * s
        for i in range(2): a('v_permlane32_swap_b32 v%d, v%d' % (q + i, q + 2 + i))
    for s in range(4):
        q = Q + 4 * s
        for i in range(2): a('v_permlane16_swap_b32 v%d, v%d' % (q + i, q + 2 + i))
    for i in range(32): a('v_mov_b32 v%d, 0' % (O + i))
    a('v_mov_b32 v%d, 0' % vM)
    a('v_mov_b32 v%d, 0' % vL0)
    a('v_mov_b32 v%d, 0' % vL1)
    for p in range(2): a('v_add_u32 v%d, s%d, v%d' % (vVa[p], S_V[0], vVpat[p]))
    stamp(a, 5)
    entry = [set(x) for x in a.lq]
    a.label('L_att_H')
    a('s_cmp_eq_u32 s%d, 0' % S_HH)
    a('s_cselect_b32 s%d, s%d, s%d' % (S_LD, S_K[3], S_V[3]))
    a('s_add_u32 m0, s%d, s%d' % (S_LD, S_HOFF))
    a('s_waitcnt vmcnt(16)')
    a('s_barrier')
    dl = dma_list()
    for n in range(8):
        s, u = n >> 1, n & 1
        for x in dl[n]: a(x)
        a('%s %s, %s, %s, %s' % (MF16, vr(S + 4 * u, 4), vr(F + 4 * n, 4), vr(Q + 4 * s, 4), '0' if s == 0 else vr(S + 4 * u, 4)))
        for e in range(2):
            a('ds_read_b64_tr_b16 %s, v%d offset:%d' % (vr(F + 4 * n + 2 * e, 2), vVa[n & 1], e * 4352 + (n >> 1) * 64))
    for u in range(2): a('v_add_u32 v%d, s%d, v%d' % (vKa[u], S_K[0], vKpat[u]))
    rotate(a)
    for p in range(2): a('v_add_u32 v%d, s%d, v%d' % (vVa[p], S_V[0], vVpat[p]))
    for i in range(8):
        a('v_fma_f32 v%d, v%d, s%d, -v%d' % (S + i, S + i, S_C, vM))
    max_tree(a, range(S, S + 8), vT)
    a('v_cmp_lt_f32 vcc, s%d, v%d' % (S_T, vT))
    a('s_cbranch_vccnz L_slow_H')
    a.label('L_back_H')
    for i in range(8): a('v_exp_f32 v%d, v%d' % (S + i, S + i))
    for i in range(4):
        a('v_add_f32 v%d, v%d, v%d' % (vL0, vL0, S + 2 * i))
        a('v_add_f32 v%d, v%d, v%d' % (vL1, vL1, S + 2 * i + 1))
        a('v_cvt_pk_bf16_f32 v%d, v%d, v%d' % (S + i, S + 2 * i, S + 2 * i + 1))
    for n in range(8):
        a('%s %s, %s, %s, %s' % (MF16, vr(O + 4 * n, 4), vr(F + 4 * n, 4), vr(S, 4), vr(O + 4 * n, 4)))
        a('ds_read_b128 %s, v%d offset:%d' % (vr(F + 4 * n, 4), vKa[n & 1], (n >> 1) * 64))
    a('s_add_u32 s%d, s%d, 1' % (S_CNT, S_CNT))
    a('s_cmp_lt_u32 s%d, 16' % S_CNT)
    a('s_cbranch_scc1 L_att_H')
    assert [set(x) for x in a.lq] == entry
    stamp(a, 6)
    a('v_add_f32 v%d, v%d, v%d' % (vL0, vL0, vL1))
    a('v_mov_b32 v%d, v%d' % (vL1, vL0))
    a('v_permlane32_swap_b32 v%d, v%d' % (vL0, vL1))
    a('v_add_f32 v%d, v%d, v%d' % (vL0, vL0, vL1))
    a('v_mov_b32 v%d, v%d' % (vL1, vL0))
    a('v_permlane16_swap_b32 v%d, v%d' % (vL0, vL1))
    a('v_add_f32 v%d, v%d, v%d' % (vL0, vL0, vL1))
    a('v_rcp_f32 v%d, v%d' % (vL0, vL0))
    a('v_and_b32 v1, 15, v0')
    a('v_lshlrev_b32 v1, 4, v1')
    a('v_bfe_u32 v2, v0, 4, 1')
    a('v_lshl_add_u32 v1, v2, 8, v1')
    a('v_lshrrev_b32 v2, 5, v0')
    a('v_lshl_add_u32 v1, v2, 3, v1')
    for t in range(8):
        b = O + 4 * t
        for i in range(4): a('v_mul_f32 v%d, v%d, v%d' % (b + i, b + i, vL0))
        for i in range(2): a('v_cvt_pk_bf16_f32 v%d, v%d, v%d' % (b + i, b + 2 * i, b + 2 * i + 1))
        a('buffer_store_dwordx2 %s, v1, %s, 0 offen offset:%d' % (vr(b, 2), sr(SRD_O, 4), t * 512))
    if cfg.prof:
        a('s_waitcnt vmcnt(0)')
        stamp(a, 7); stamp_rt(a, 8)
        dump_stamps(a, 9, 100, 12, PROF_OFF)
    a('s_endpgm')
    a.label('L_slow_H')
    a('v_mov_b32 v%d, v%d' % (vT2, vT))
    a('v_permlane32_swap_b32 v%d, v%d' % (vT, vT2))
    a('v_max_f32 v%d, v%d, v%d' % (vT, vT, vT2))
    a('v_mov_b32 v%d, v%d' % (vT2, vT))
    a('v_permlane16_swap_b32 v%d, v%d' % (vT, vT2))
    a('v_max_f32 v%d, v%d, v%d' % (vT, vT, vT2))
    a('v_max_f32 v%d, s%d, v%d' % (vT, S_FLOOR, vT))
    a('v_add_f32 v%d, v%d, v%d' % (vM, vM, vT))
    a('v_min_f32_e64 v%d, -v%d, 0' % (vT2, vT))
    a('v_exp_f32 v%d, v%d' % (vT2, vT2))
    for i in range(8): a('v_sub_f32 v%d, v%d, v%d' % (S + i, S + i, vT))
    a('v_mul_f32 v%d, v%d, v%d' % (vL0, vL0, vT2))
    a('v_mul_f32 v%d, v%d, v%d' % (vL1, vL1, vT2))
    for i in range(32): a('v_mul_f32 v%d, v%d, v%d' % (O + i, O + i, vT2))
    a('s_mov_b32 s%d, 0' % S_FLOOR)
    a('s_mov_b32 s%d, 0x41000000' % S_T)
    a('s_branch L_back_H')

LDS2 = 81920
def gen_oproj():
    D = 4
    ACC, OF, WFR = 4, 84, 164
    vO = [180, 181, 182, 183, 184]
    vDW = [185, 186, 187, 188]
    vR = [189, 190, 191, 192]
    a = Asm()
    a.label('oproj_kernel')
    a('s_cmp_ge_u32 s2, 256')
    a('s_cbranch_scc1 L_op_end')
    load_ptrs(a)
    stamp_rt(a, 0)
    stamp(a, 1)
    a('v_lshrrev_b32 v1, 6, v0')
    a('v_and_b32 v0, 63, v0')
    a('v_readfirstlane_b32 s%d, v1' % S_WAVE)
    a('s_and_b32 s42, s2, 7')
    a('s_lshr_b32 s43, s2, 3')
    a('s_lshr_b32 s%d, s42, 2' % S_BR)
    a('s_and_b32 s45, s42, 3')
    a('s_lshr_b32 s46, s43, 3')
    a('s_lshl_b32 s45, s45, 2')
    a('s_add_u32 s45, s45, s46')
    a('s_and_b32 s47, s43, 7')
    a('s_waitcnt lgkmcnt(0)')
    a('s_cmp_eq_u32 s%d, 0' % S_BR)
    a('s_cselect_b64 s[24:25], s[24:25], s[34:35]')
    a('s_lshl_b32 s%d, s%d, 4' % (S_TMP, S_BR))
    a('s_add_u32 s%d, s%d, s45' % (S_TMP, S_TMP))
    a('s_mul_i32 s%d, s%d, 655360' % (S_TMP, S_TMP))
    a('s_lshl_b32 s%d, s%d, 15' % (S_T2, S_WAVE))
    a('s_add_u32 s%d, s%d, s%d' % (S_TMP, S_TMP, S_T2))
    a('s_add_u32 s%d, s40, s%d' % (SRD_A, S_TMP))
    a('s_addc_u32 s%d, s41, 0' % (SRD_A + 1))
    a('s_mov_b32 s%d, %d' % (SRD_A + 2, 4 * 131072 + 32768))
    a('s_mov_b32 s%d, 0x20000' % (SRD_A + 3))
    a('s_lshl_b32 s%d, s%d, 20' % (S_TMP, S_WAVE))
    a('s_lshl_b32 s%d, s47, 7' % S_T2)
    a('s_add_u32 s%d, s%d, s%d' % (S_TMP, S_TMP, S_T2))
    a('s_add_u32 s%d, s24, s%d' % (SRD_B, S_TMP))
    a('s_addc_u32 s%d, s25, 0' % (SRD_B + 1))
    a('s_mov_b32 s%d, %d' % (SRD_B + 2, 1048576 - 896))
    a('s_mov_b32 s%d, 0x20000' % (SRD_B + 3))
    a('v_lshlrev_b32 v%d, 4, v0' % vO[0])
    for q in range(1, 5): a('v_add_u32 v%d, %d, v%d' % (vO[q], q * 131072, vO[0]))
    a('v_lshrrev_b32 v1, 4, v0')
    a('v_lshlrev_b32 v2, 1, v1')
    a('v_xor_b32 v2, v2, v0')
    a('v_and_b32 v2, 7, v2')
    a('v_lshlrev_b32 v2, 4, v2')
    a('v_lshrrev_b32 v3, 3, v0')
    a('v_lshl_add_u32 v%d, v3, 10, v2' % vDW[0])
    for n in range(1, 4): a('v_add_u32 v%d, %d, v%d' % (vDW[n], n * 8192, vDW[0]))
    a('s_lshl_b32 s%d, s%d, 14' % (S_LA, S_WAVE))

    def issue(i):
        sl = i % D
        a('s_mov_b32 s%d, %d' % (S_LB, i * 32768))
        for n in range(4):
            a('s_add_u32 m0, s%d, %d' % (S_LA, sl * 4096 + n * 1024))
            a('s_mov_b32 s%d, %d' % (S_XO, i * 1024))
            a('buffer_load_dwordx4 v%d, %s, s%d offen lds' % (vDW[n], sr(SRD_B, 4), S_LB))
        for q in range(5):
            a('buffer_load_dwordx4 %s, v%d, %s, s%d offen' % (vr(OF + 20 * sl + 4 * q, 4), vO[q], sr(SRD_A, 4), S_XO))
    for i in range(D - 1): issue(i)
    a('v_bfe_u32 v2, v0, 2, 2')
    a('v_and_b32 v3, 1, v1')
    a('v_lshl_add_u32 v2, v3, 2, v2')
    a('v_lshrrev_b32 v3, 1, v2')
    a('v_lshrrev_b32 v1, 1, v1')
    a('v_lshl_add_u32 v2, v1, 4, v2')
    a('v_lshlrev_b32 v2, 7, v2')
    a('v_and_b32 v1, 3, v0')
    a('v_lshl_add_u32 v2, v1, 3, v2')
    a('v_add_u32 v2, s%d, v2' % S_LA)
    for t in range(4):
        a('v_xor_b32 v1, %d, v3' % t)
        a('v_lshl_add_u32 v%d, v1, 5, v2' % vR[t])
    stamp(a, 2)
    NK = 32
    for i in range(NK):
        sl = i % D
        if i + D - 1 < NK: issue(i + D - 1)
        left = min(NK - 1 - i, D - 1)
        a('s_waitcnt vmcnt(%d)' % (9 * left))
        for t in range(4):
            for e in range(2):
                a('ds_read_b64_tr_b16 %s, v%d offset:%d' % (vr(WFR + 4 * t + 2 * e, 2), vR[t], sl * 4096 + e * 1024))
        for t in range(4):
            for q in range(5):
                d = vr(ACC + 4 * (5 * t + q), 4)
                a('%s %s, %s, %s, %s' % (MF16, d, vr(WFR + 4 * t, 4), vr(OF + 20 * sl + 4 * q, 4), '0' if i == 0 else d))
        if i == 0: stamp(a, 3)
    stamp(a, 4)
    a('s_barrier')
    a('s_mul_i32 s%d, s%d, 20480' % (S_TMP, S_WAVE))
    a('v_lshlrev_b32 v1, 4, v0')
    a('v_add_u32 v2, s%d, v1' % S_TMP)
    for k in range(20):
        a('ds_write_b128 v2, %s offset:%d' % (vr(ACC + 4 * k, 4), k * 1024))
    a('s_mul_i32 s%d, s45, %d' % (S_TMP, 80 * 2048))
    a('s_lshl_b32 s%d, s%d, 10' % (S_T2, S_BR))
    a('s_add_u32 s%d, s%d, s%d' % (S_TMP, S_TMP, S_T2))
    a('s_lshl_b32 s%d, s47, 7' % S_T2)
    a('s_add_u32 s%d, s%d, s%d' % (S_TMP, S_TMP, S_T2))
    a('s_lshl_b32 s%d, s%d, 5' % (S_T2, S_WAVE))
    a('s_add_u32 s%d, s%d, s%d' % (S_TMP, S_TMP, S_T2))
    a('s_add_u32 s%d, s36, s%d' % (SRD_O, S_TMP))
    a('s_addc_u32 s%d, s37, 0' % (SRD_O + 1))
    a('s_mov_b32 s%d, %d' % (SRD_O + 2, 79 * 2048 + 32))
    a('s_mov_b32 s%d, 0x20000' % (SRD_O + 3))
    a('s_mul_i32 s%d, s%d, 5120' % (S_TMP, S_WAVE))
    a('v_add_u32 v2, s%d, v1' % S_TMP)
    a('v_and_b32 v3, 15, v0')
    a('v_lshlrev_b32 v3, 11, v3')
    a('v_lshrrev_b32 v1, 4, v0')
    a('v_lshl_add_u32 v3, v1, 3, v3')
    a('v_add_u32 v1, 40960, v2')
    a('s_waitcnt lgkmcnt(0)')
    a('s_barrier')
    R = OF
    for q in range(5):
        for w in range(4):
            a('ds_read_b128 %s, v%d offset:%d' % (vr(R + 16 * q + 4 * w, 4), 2 if w < 2 else 1, (w & 1) * 20480 + q * 1024))
    for q in range(5):
        b = R + 16 * q
        for i in range(4):
            a('v_add_f32 v%d, v%d, v%d' % (b + i, b + i, b + 4 + i))
            a('v_add_f32 v%d, v%d, v%d' % (b + 8 + i, b + 8 + i, b + 12 + i))
        for i in range(4):
            a('v_add_f32 v%d, v%d, v%d' % (b + i, b + i, b + 8 + i))
        for i in range(2):
            a('v_cvt_pk_bf16_f32 v%d, v%d, v%d' % (b + i, b + 2 * i, b + 2 * i + 1))
        a('s_mov_b32 s%d, %d' % (S_XO, q * 32768))
        a('buffer_store_dwordx2 %s, v3, %s, s%d offen' % (vr(b, 2), sr(SRD_O, 4), S_XO))
    if cfg.prof:
        a('s_waitcnt vmcnt(0)')
        stamp(a, 5); stamp_rt(a, 6)
        dump_stamps(a, 7, 100, 4, PROF_OFF + (1 << 20))
    a.label('L_op_end')
    a('s_endpgm')
    return a

HEADER = open('concat_heads__gqa_block_cached__mha_block_cached__near_ridge.s.ref').read().split('; Override')[0]

def kd(name, nv, ns):
    acc = (nv + 3) // 4 * 4
    return '''.amdhsa_kernel %s
  .amdhsa_next_free_vgpr %d
  .amdhsa_next_free_sgpr %d
  .amdhsa_accum_offset %d
  .amdhsa_group_segment_fixed_size 0
  .amdhsa_kernarg_size 104
  .amdhsa_user_sgpr_count 2
  .amdhsa_user_sgpr_kernarg_segment_ptr 1
  .amdhsa_system_sgpr_workgroup_id_x 1
.end_amdhsa_kernel
''' % (name, nv, ns, acc)

def build(path, verbose=True):
    k1 = gen_attn(); k1.fix_hazards(verbose)
    k2 = gen_oproj(); k2.fix_hazards(verbose)
    v1, s1 = k1.max_regs(); v2, s2 = k2.max_regs()
    if verbose: print('attn regs', v1, s1, 'oproj regs', v2, s2)
    assert v1 <= 168
    out = HEADER
    out += '; @launch kernel=attn_kernel grid=(256,1,1) block=(768,1,1) lds=%d\n' % LDS1
    out += '; @launch kernel=oproj_kernel grid=(256,1,1) block=(256,1,1) lds=%d\n' % LDS2
    out += '.amdgcn_target "amdgcn-amd-amdhsa--gfx950"\n.text\n'
    for name, k in (('attn_kernel', k1), ('oproj_kernel', k2)):
        out += '.globl %s\n.p2align 8\n.type %s,@function\n' % (name, name)
        out += k.text()
    out += '.section .rodata,"a"\n.p2align 6\n' + kd('attn_kernel', v1, s1) + '.p2align 6\n' + kd('oproj_kernel', v2, s2)
    open(path, 'w').write(out)

if __name__ == '__main__':
    path = sys.argv[1]
    for kv in sys.argv[2:]:
        k, v = kv.split('=')
        setattr(cfg, k, int(v))
    build(path)
```
